```python
import torch

def _softmax(x, axis=-1):
    return torch.softmax(x, dim=axis)
def _gelu(x):
    return torch.nn.functional.gelu(x, approximate="tanh")
def _silu(x):
    return torch.nn.functional.silu(x)
def _sigmoid(x):
    return torch.sigmoid(x)
def _layernorm(x, axis=-1, eps=1e-5):
    m = x.mean(dim=axis, keepdim=True)
    v = x.var(dim=axis, keepdim=True, unbiased=False)
    return (x - m) / torch.sqrt(v + eps)
def _scatter_add(tgt, idx, src, axis=0):
    return tgt.clone().index_add_(axis, idx, src)
def _segment_sum(src, seg, n):
    out = torch.zeros((n,) + src.shape[1:], dtype=src.dtype)
    return out.index_add_(0, seg, src)
def _pad(x, pw):
    flat = tuple(v for pair in reversed(pw) for v in pair)
    return torch.nn.functional.pad(x, flat)

kernel_name = 'standalone__linear_kernel_rfa__prompt'

def setup_inputs():

    _w = (lambda a: (lambda t: t.to(torch.bfloat16) if t.is_floating_point() else t)(torch.as_tensor(a)))
    B, H, Sq, Sk, D, M = 1, 32, 2048, 2048, 128, 16
    return {
        "q": _w((lambda *s: torch.randn(*s, dtype=torch.bfloat16) * 0.2)(B, H, Sq, D)),
        "k": _w((lambda *s: torch.randn(*s, dtype=torch.bfloat16) * 1.6)(B, H, Sk, D)),
        "v": _w((lambda *s: torch.randn(*s, dtype=torch.bfloat16) * 1.6)(B, H, Sk, D)),
        "omega": _w((lambda *s: torch.randn(*s, dtype=torch.bfloat16) * 1.6)(M, D)),
    }

def reference(q, k, v, omega):
    d = q.shape[-1]
    m = omega.shape[0]
    scale = float(d) ** -0.25
    qs = q * scale
    ks = k * scale
    q_proj = torch.einsum("bhsd,md->bhsm", qs, omega)
    k_proj = torch.einsum("bhsd,md->bhsm", ks, omega)
    q_sq = 0.5 * torch.einsum("bhsd,bhsd->bhs", qs, qs)[..., None]
    k_sq = 0.5 * torch.einsum("bhsd,bhsd->bhs", ks, ks)[..., None]
    inv_sqrt_m = float(m) ** -0.5
    phi_q = torch.exp(q_proj - q_sq) * inv_sqrt_m + 1e-6
    phi_k = torch.exp(k_proj - k_sq) * inv_sqrt_m + 1e-6
    kv = torch.einsum("bhsm,bhsd->bhmd", phi_k, v)
    z  = torch.einsum("bhsm->bhm", phi_k)
    num = torch.einsum("bhqm,bhmd->bhqd", phi_q, kv)
    den = torch.einsum("bhqm,bhm->bhq", phi_q, z)[..., None] + 1e-6
    return num / den
```

```python
import sys, struct
KN = "standalone__linear_kernel_rfa__prompt_kernel"
TB = 32*2048*128*2
def f2u(x): return struct.unpack("<I", struct.pack("<f", x))[0]

HEAD = """; Kernarg layout for this problem (56 bytes, ptrs only, base s[0:1]):
"""

L_KQ = 0
L_V = 65536
L_PHI = 131072
L_OM = L_PHI + 8192
L_KVF = L_OM + 4096
L_END = L_KVF + 4096 + 512
SLOT = 16384
EPOCH_OFF = 8 << 20
STAMP_OFF = 128 << 20

class G:
    def __init__(s, opts):
        s.o = opts; s.t = []; s.nst = 0
    def e(s, x): s.t.append(x)
    def stamp(s):
        if s.o.get("stamps"):
            i = s.nst; s.nst += 1
            s.e(f"s_memrealtime s[{70+2*i}:{71+2*i}]")

def gen(opts):
    g = G(opts); e = g.e
    LD = opts.get("ld", "nt"); ST = opts.get("st", "")
    sQ, sK, sV, sO, sOM, sW = 24, 28, 32, 36, 40, 44
    sBLK, sWV, sLB, sGO, sT = 18, 19, 20, 21, 22
    sSC, sHI, sL2E, sEPS, sTAG, sEP, sSLOT, sCNT = 48, 50, 51, 52, 53, 54, 55, 23
    sM = 56
    sSEL = 64
    vL, vI, vG = 1, 2, 3
    vD = 4
    vF = 8
    vOA = 12
    vONE = 13
    vTAG = 14
    vT2 = 15
    vX = 16
    vOM = 32
    vP = 48
    vGm = 52
    vS = 56
    vT = 60
    vPH = 68
    vA = 72
    vB = 104
    vAC = 120
    vZ = 124
    g.stamp()
    e("s_cmp_ge_u32 s2, 256"); e("s_cbranch_scc1 L_end")
    e(f"s_load_dwordx2 s[{sK}:{sK+1}], s[0:1], 8")
    e(f"s_load_dwordx2 s[{sOM}:{sOM+1}], s[0:1], 24")
    e(f"s_load_dwordx2 s[{sV}:{sV+1}], s[0:1], 16")
    e(f"s_load_dwordx2 s[{sQ}:{sQ+1}], s[0:1], 0")
    e(f"s_load_dwordx2 s[{sO}:{sO+1}], s[0:1], 32")
    e(f"s_load_dwordx2 s[{sW}:{sW+1}], s[0:1], 48")
    e(f"s_and_b32 s3, s2, 7"); e(f"s_lshl_b32 s3, s3, 5"); e(f"s_lshr_b32 s{sBLK}, s2, 3"); e(f"s_add_u32 s{sBLK}, s{sBLK}, s3")
    e(f"v_lshrrev_b32 v{vT}, 6, v0")
    e(f"v_and_b32 v{vL}, 63, v0")
    e(f"v_readfirstlane_b32 s{sWV}, v{vT}")
    e(f"v_and_b32 v{vI}, 15, v{vL}")
    e(f"v_lshrrev_b32 v{vG}, 4, v{vL}")
    e(f"v_xor_b32 v{vT}, v{vI}, v{vG}")
    e(f"v_lshlrev_b32 v{vT}, 4, v{vT}")
    e(f"v_lshl_add_u32 v{vD}, v{vG}, 8, v{vT}")
    for b in range(1, 4): e(f"v_xor_b32 v{vD+b}, {64*b}, v{vD}")
    e(f"s_lshl_b32 s{sLB}, s{sWV}, 12")
    e(f"s_lshl_b32 s{sGO}, s{sBLK}, 16")
    e(f"s_add_u32 s{sGO}, s{sGO}, s{sLB}")
    for r, n in [(sK, TB), (sOM, 4096), (sV, TB), (sQ, TB), (sO, TB), (sW, 1 << 28)]:
        e(f"s_mov_b32 s{r+2}, {n}"); e(f"s_mov_b32 s{r+3}, 0x20000")
    def dma(srd, m0expr, soff, pol):
        e(m0expr)
        e("s_nop 0")
        for b in range(4):
            e(f"buffer_load_dwordx4 v{vD+b}, s[{srd}:{srd+3}], {soff} offen offset:{1024*b} {pol} lds")
    e(f"s_cmp_lg_u32 s{sWV}, 0")
    e("s_waitcnt lgkmcnt(0)")
    e("s_cbranch_scc1 L_noom")
    dma(sOM, f"s_mov_b32 m0, {L_OM}", "0", "")
    e("L_noom:")
    dma(sK, f"s_mov_b32 m0, s{sLB}", f"s{sGO}", LD)
    e(f"s_lshr_b32 s{sT}, s{sBLK}, 3"); e(f"s_lshl_b32 s{sT}, s{sT}, 8"); e(f"s_add_u32 s{sEP}, s{sT}, {EPOCH_OFF}")
    e(f"s_load_dword s{sTAG}, s[{sW}:{sW+1}], s{sEP}")
    e("s_barrier")
    dma(sV, f"s_add_u32 m0, s{sLB}, {L_V}", f"s{sGO}", LD)
    g.stamp()
    e(f"v_lshl_add_u32 v{vF}, v{vI}, 8, v{vT}")
    e(f"v_add_u32 v{vF}, s{sLB}, v{vF}")
    for b in range(1, 4): e(f"v_xor_b32 v{vF+b}, {64*b}, v{vF}")
    e(f"s_mov_b32 s{sSC}, {f2u(128.0**-0.25):#x}"); e(f"s_mov_b32 s{sSC+1}, s{sSC}")
    e(f"s_mov_b32 s{sHI}, 0xffff0000")
    e(f"s_mov_b32 s{sL2E}, {f2u(1.4426950408889634):#x}")
    e(f"s_mov_b32 s{sEPS}, {f2u(1e-6):#x}")
    for r in range(4):
        m = 0x1000010000100001 << r
        e(f"s_mov_b32 s{sM+2*r}, {m & 0xffffffff:#x}"); e(f"s_mov_b32 s{sM+2*r+1}, {m >> 32:#x}")
        e(f"s_mov_b32 s{sSEL+r}, {0x07060500 + r:#x}")
    e(f"v_mov_b32 v{vONE}, 1.0")
    e("s_waitcnt vmcnt(4)")
    def readx():
        for j in range(4): e(f"ds_read_b128 v[{vX+4*j}:{vX+4*j+3}], v{vF+j}")
    readx()
    e("s_waitcnt lgkmcnt(0)")
    e("s_barrier")
    g.stamp()
    dma(sQ, f"s_mov_b32 m0, s{sLB}", f"s{sGO}", LD)
    e(f"s_sub_u32 s{sT}, {L_OM}, s{sLB}")
    for j in range(4):
        e(f"v_add_u32 v{vT+j}, s{sT}, v{vF+j}")
    for j in range(4): e(f"ds_read_b128 v[{vOM+4*j}:{vOM+4*j+3}], v{vT+j}")
    e(f"s_add_u32 s{sTAG}, s{sTAG}, 0x01010101")
    def phi(first):
        for r in range(16):
            x = vX + r; t = vT + 2*(r & 1)
            e(f"v_lshlrev_b32 v{t}, 16, v{x}")
            e(f"v_and_b32 v{t+1}, s{sHI}, v{x}")
            e(f"v_pk_mul_f32 v[{t}:{t+1}], v[{t}:{t+1}], s[{sSC}:{sSC+1}]")
            e(f"v_cvt_pk_bf16_f32 v{x}, v{t}, v{t+1}")
        if first: e("s_waitcnt lgkmcnt(0)")
        e("s_nop 1")
        for j in range(4):
            c = "0" if j == 0 else f"v[{vGm}:{vGm+3}]"
            e(f"v_mfma_f32_16x16x32_bf16 v[{vGm}:{vGm+3}], v[{vX+4*j}:{vX+4*j+3}], v[{vX+4*j}:{vX+4*j+3}], {c}")
        for j in range(4):
            c = "0" if j == 0 else f"v[{vP}:{vP+3}]"
            e(f"v_mfma_f32_16x16x32_bf16 v[{vP}:{vP+3}], v[{vOM+4*j}:{vOM+4*j+3}], v[{vX+4*j}:{vX+4*j+3}], {c}")
        e("s_nop 4")
        e(f"v_cndmask_b32 v{vT}, 0, v{vGm}, s[{sM}:{sM+1}]")
        for r in range(1, 4):
            e(f"v_cndmask_b32 v{vT}, v{vT}, v{vGm+r}, s[{sM+2*r}:{sM+2*r+1}]")
        e("s_nop 1")
        e(f"v_mfma_f32_16x16x4_f32 v[{vS}:{vS+3}], v{vONE}, v{vT}, 0")
        e(f"v_cvt_pk_bf16_f32 v{vT+4}, v{vP}, v{vP+1}")
        e(f"v_cvt_pk_bf16_f32 v{vT+5}, v{vP+2}, v{vP+3}")
        e(f"v_lshlrev_b32 v{vP}, 16, v{vT+4}")
        e(f"v_and_b32 v{vP+1}, s{sHI}, v{vT+4}")
        e(f"v_lshlrev_b32 v{vP+2}, 16, v{vT+5}")
        e(f"v_and_b32 v{vP+3}, s{sHI}, v{vT+5}")
        e("s_nop 4")
        e(f"v_cvt_pk_bf16_f32 v{vT}, v{vS}, v{vS}")
        e(f"v_and_b32 v{vT}, s{sHI}, v{vT}")
        for r in range(4): e(f"v_fma_f32 v{vP+r}, v{vT}, -0.5, v{vP+r}")
        def rnd():
            e(f"v_cvt_pk_bf16_f32 v{vT+4}, v{vP}, v{vP+1}")
            e(f"v_cvt_pk_bf16_f32 v{vT+5}, v{vP+2}, v{vP+3}")
            e(f"v_lshlrev_b32 v{vP}, 16, v{vT+4}")
            e(f"v_and_b32 v{vP+1}, s{sHI}, v{vT+4}")
            e(f"v_lshlrev_b32 v{vP+2}, 16, v{vT+5}")
            e(f"v_and_b32 v{vP+3}, s{sHI}, v{vT+5}")
        rnd()
        for r in range(4): e(f"v_mul_f32 v{vP+r}, s{sL2E}, v{vP+r}")
        for r in range(4): e(f"v_exp_f32 v{vP+r}, v{vP+r}")
        e("s_nop 0")
        rnd()
        e(f"v_mov_b32 v{vT}, 0x3e800000")
        for r in range(4): e(f"v_fma_f32 v{vP+r}, v{vP+r}, v{vT}, s{sEPS}")
        e(f"v_cvt_pk_bf16_f32 v{vPH}, v{vP}, v{vP+1}")
        e(f"v_cvt_pk_bf16_f32 v{vPH+1}, v{vP+2}, v{vP+3}")
    phi(True)
    e(f"v_and_b32 v{vT}, 1, v{vI}"); e(f"v_lshlrev_b32 v{vT}, 8, v{vT}")
    e(f"v_lshrrev_b32 v{vT+1}, 1, v{vI}"); e(f"v_lshl_add_u32 v{vT}, v{vT+1}, 5, v{vT}")
    e(f"v_lshl_add_u32 v{vT}, v{vG}, 3, v{vT}")
    e(f"s_lshr_b32 s{sT}, s{sLB}, 3"); e(f"s_add_u32 s{sT}, s{sT}, {L_PHI}")
    e(f"v_add_u32 v{vT}, s{sT}, v{vT}")
    e(f"ds_write_b64 v{vT}, v[{vPH}:{vPH+1}]")
    vR, vC, vU = vT+2, vT+3, vT+4
    e(f"v_bfe_u32 v{vR}, v{vL}, 2, 2"); e(f"v_and_b32 v{vC}, 3, v{vL}")
    e(f"v_and_b32 v{vU}, 1, v{vG}"); e(f"v_lshl_add_u32 v{vU}, v{vU}, 2, v{vR}")
    e(f"v_lshrrev_b32 v{vT+5}, 1, v{vG}")
    e(f"v_lshl_add_u32 v{vT+6}, v{vT+5}, 4, v{vU}")
    e(f"v_lshlrev_b32 v{vT+6}, 5, v{vT+6}"); e(f"v_lshl_add_u32 v{vT+6}, v{vC}, 3, v{vT+6}")
    e(f"v_add_u32 v{vOA}, {L_PHI}, v{vT+6}")
    e(f"v_lshlrev_b32 v{vU}, 1, v{vU}")
    e(f"v_lshl_add_u32 v{vT+6}, v{vT+5}, 4, v{vU}")
    e(f"v_lshlrev_b32 v{vT+6}, 8, v{vT+6}")
    e(f"v_lshrrev_b32 v{vT+7}, 1, v{vC}")
    e(f"s_lshl_b32 s{sT}, s{sWV}, 1")
    e(f"v_or_b32 v{vT+7}, s{sT}, v{vT+7}")
    e(f"v_xor_b32 v{vT+7}, v{vT+7}, v{vU}")
    e(f"v_and_b32 v{vT+7}, 15, v{vT+7}")
    e(f"v_lshl_add_u32 v{vT+6}, v{vT+7}, 4, v{vT+6}")
    e(f"v_and_b32 v{vC}, 1, v{vC}")
    e(f"v_lshl_add_u32 v{vT+6}, v{vC}, 3, v{vT+6}")
    e(f"v_add_u32 v{vT2}, {L_V}, v{vT+6}")
    e(f"v_xor_b32 v{vTAG}, 16, v{vT2}")
    e(f"v_add_u32 v{vTAG}, 256, v{vTAG}")
    e("s_waitcnt lgkmcnt(0)")
    e("s_barrier")
    g.stamp()
    e(f"s_cmp_ge_u32 s{sWV}, 8")
    e("s_cbranch_scc1 L_skipA")
    for Gi in range(8):
        for h in range(2):
            e(f"ds_read_b64_tr_b16 v[{vA+4*Gi+2*h}:{vA+4*Gi+2*h+1}], v{vOA} offset:{Gi*1024 + h*256}")
    e(f"v_mov_b32 v{vT}, 0x3f803f80");
    for r in range(1, 4): e(f"v_mov_b32 v{vT+r}, v{vT}")
    e("s_waitcnt lgkmcnt(0)")
    for Gi in range(8):
        c = "0" if Gi == 0 else f"v[{vZ}:{vZ+3}]"
        e(f"v_mfma_f32_16x16x32_bf16 v[{vZ}:{vZ+3}], v[{vA+4*Gi}:{vA+4*Gi+3}], v[{vT}:{vT+3}], {c}")
    e("L_skipA:")
    e("s_waitcnt vmcnt(4)")
    e("s_barrier")
    g.stamp()
    e("s_cbranch_scc1 L_skipB")
    def breg(Gi): return (vB + 4*Gi) if Gi < 4 else (vX + 4*(Gi-4))
    for Gi in range(8):
        e(f"ds_read_b64_tr_b16 v[{breg(Gi)}:{breg(Gi)+1}], v{vT2} offset:{Gi*8192}")
        e(f"ds_read_b64_tr_b16 v[{breg(Gi)+2}:{breg(Gi)+3}], v{vTAG} offset:{Gi*8192}")
    for Gi in range(8):
        e(f"s_waitcnt lgkmcnt({14-2*Gi})")
        c = "0" if Gi == 0 else f"v[{vAC}:{vAC+3}]"
        e(f"v_mfma_f32_16x16x32_bf16 v[{vAC}:{vAC+3}], v[{vA+4*Gi}:{vA+4*Gi+3}], v[{breg(Gi)}:{breg(Gi)+3}], {c}")
    e(f"v_mov_b32 v{vTAG}, s{sTAG}")
    e(f"s_lshl_b32 s{sSLOT}, s{sBLK}, 14")
    e(f"s_lshr_b32 s{sT}, s{sLB}, 2")
    e(f"v_lshl_add_u32 v{vOA}, v{vL}, 4, s{sT}")
    e("s_nop 4")
    for r in range(4): e(f"v_perm_b32 v{vAC+r}, v{vAC+r}, v{vTAG}, s{sSEL+r}")
    e(f"buffer_store_dwordx4 v[{vAC}:{vAC+3}], v{vOA}, s[{sW}:{sW+3}], s{sSLOT} offen sc1")
    e(f"v_lshlrev_b32 v{vT2}, 4, v{vG}")
    e(f"v_add_u32 v{vT2}, 8192, v{vT2}")
    e(f"s_cmp_lg_u32 s{sWV}, 0")
    e("s_cbranch_scc1 L_noz")
    for r in range(4): e(f"v_perm_b32 v{vZ+r}, v{vZ+r}, v{vTAG}, s{sSEL+r}")
    e(f"s_mov_b64 exec, 0x0001000100010001") if False else None
    e(f"s_mov_b32 exec_lo, 0x00010001"); e(f"s_mov_b32 exec_hi, 0x00010001")
    e(f"buffer_store_dwordx4 v[{vZ}:{vZ+3}], v{vT2}, s[{sW}:{sW+3}], s{sSLOT} offen sc1")
    e("s_mov_b64 exec, -1")
    e("s_waitcnt vmcnt(2)")
    e("s_branch L_q")
    e("L_noz:")
    e("s_waitcnt vmcnt(1)")
    e("s_branch L_q")
    e("L_skipB:")
    e("s_waitcnt vmcnt(0)")
    e("L_q:")
    g.stamp()
    readx()
    e("s_waitcnt lgkmcnt(0)")
    phi(False)
    g.stamp()
    e(f"s_cmp_ge_u32 s{sWV}, 8")
    e("s_cbranch_scc1 L_skipP")
    e(f"s_and_b32 s{sSLOT}, s{sSLOT}, {~(8*SLOT-1) & 0xffffffff:#x}")
    for r in range(4):
        e(f"s_bfe_u32 s{sSEL+r}, s{sTAG}, {(8<<16) | (8*r):#x}")
    e(f"s_mov_b32 s{sCNT}, 0")
    def poll(lbl, voff, dst):
        e(f"{lbl}:")
        for j in range(8):
            e(f"s_add_u32 s{sT}, s{sSLOT}, {j*SLOT}")
            e(f"buffer_load_dwordx4 v[{vA+4*j}:{vA+4*j+3}], v{voff}, s[{sW}:{sW+3}], s{sT} offen sc1")
        for j in range(8):
            e(f"s_waitcnt vmcnt({7-j})")
            for r in range(4): e(f"v_xor_b32 v{vA+4*j+r}, s{sSEL+r}, v{vA+4*j+r}")
            if j == 0:
                e(f"v_or_b32 v{vT}, v{vA}, v{vA+1}")
                e(f"v_or3_b32 v{vT}, v{vA+2}, v{vA+3}, v{vT}")
            else:
                e(f"v_or3_b32 v{vT}, v{vA+4*j}, v{vA+4*j+1}, v{vT}")
                e(f"v_or3_b32 v{vT}, v{vA+4*j+2}, v{vA+4*j+3}, v{vT}")
                e(f"v_pk_add_f32 v[{vA}:{vA+1}], v[{vA}:{vA+1}], v[{vA+4*j}:{vA+4*j+1}]")
                e(f"v_pk_add_f32 v[{vA+2}:{vA+3}], v[{vA+2}:{vA+3}], v[{vA+4*j+2}:{vA+4*j+3}]")
        e(f"v_and_b32 v{vT}, 0xff, v{vT}")
        e(f"v_cmp_ne_u32 vcc, 0, v{vT}")
        e(f"s_add_u32 s{sCNT}, s{sCNT}, 1")
        e(f"s_cmp_gt_u32 s{sCNT}, 0x40000")
        e(f"s_cbranch_scc1 {lbl}_x")
        e(f"s_cbranch_vccnz {lbl}")
        e(f"{lbl}_x:")
        e(f"v_cvt_pk_bf16_f32 v{dst}, v{vA}, v{vA+1}")
        e(f"v_cvt_pk_bf16_f32 v{dst+1}, v{vA+2}, v{vA+3}")
    poll("L_poll", vOA, vT+2)
    e(f"v_bfe_u32 v{vT+4}, v{vI}, 1, 2"); e(f"v_lshlrev_b32 v{vT+4}, 10, v{vT+4}")
    e(f"v_lshl_add_u32 v{vT+4}, v{vG}, 8, v{vT+4}")
    e(f"v_lshrrev_b32 v{vT+5}, 3, v{vI}"); e(f"v_lshl_add_u32 v{vT+4}, v{vT+5}, 4, v{vT+4}")
    e(f"v_and_b32 v{vT+5}, 1, v{vI}"); e(f"v_lshl_add_u32 v{vT+4}, v{vT+5}, 3, v{vT+4}")
    e(f"s_lshl_b32 s{sT}, s{sWV}, 5"); e(f"s_add_u32 s{sT}, s{sT}, {L_KVF}")
    e(f"v_add_u32 v{vT+4}, s{sT}, v{vT+4}")
    e(f"ds_write_b64 v{vT+4}, v[{vT+2}:{vT+3}]")
    e(f"s_cmp_lg_u32 s{sWV}, 0")
    e("s_cbranch_scc1 L_skipP")
    poll("L_pollz", vT2, vT+2)
    e(f"v_lshlrev_b32 v{vT+4}, 3, v{vL}")
    e(f"v_add_u32 v{vT+4}, {L_KVF+4096}, v{vT+4}")
    e(f"ds_write_b64 v{vT+4}, v[{vT+2}:{vT+3}]")
    e(f"s_and_b32 s{sT}, s{sBLK}, 7")
    e(f"s_cbranch_scc1 L_skipP")
    e(f"v_mov_b32 v{vT+4}, s{sEP}")
    e(f"buffer_store_dword v{vTAG}, v{vT+4}, s[{sW}:{sW+3}], 0 offen")
    e("L_skipP:")
    e(f"v_lshlrev_b32 v{vT}, 4, v{vL}")
    e(f"v_add_u32 v{vT}, {L_KVF}, v{vT}")
    e(f"v_lshlrev_b32 v{vT+1}, 3, v{vL}")
    e(f"v_add_u32 v{vT+1}, {L_KVF+4096}, v{vT+1}")
    e("s_waitcnt lgkmcnt(0)")
    e("s_barrier")
    g.stamp()
    e(f"ds_read_b64 v[{vAC}:{vAC+1}], v{vT+1}")
    for u in range(4): e(f"ds_read_b128 v[{vB+4*u}:{vB+4*u+3}], v{vT} offset:{1024*u}")
    e(f"v_lshlrev_b32 v{vOA}, 4, v{vI}"); e(f"v_lshl_add_u32 v{vOA}, v{vG}, 10, v{vOA}")
    e("s_waitcnt lgkmcnt(4)")
    e(f"v_mfma_f32_16x16x16_bf16 v[{vZ}:{vZ+3}], v[{vPH}:{vPH+1}], v[{vAC}:{vAC+1}], 0")
    for t in range(8):
        if t % 2 == 0: e(f"s_waitcnt lgkmcnt({3 - t//2})")
        e(f"v_mfma_f32_16x16x16_bf16 v[{vA+4*t}:{vA+4*t+3}], v[{vPH}:{vPH+1}], v[{vB+2*t}:{vB+2*t+1}], 0")
    def rnd4(b):
        e(f"v_cvt_pk_bf16_f32 v{vT+4}, v{b}, v{b+1}")
        e(f"v_cvt_pk_bf16_f32 v{vT+5}, v{b+2}, v{b+3}")
        e(f"v_lshlrev_b32 v{b}, 16, v{vT+4}")
        e(f"v_and_b32 v{b+1}, s{sHI}, v{vT+4}")
        e(f"v_lshlrev_b32 v{b+2}, 16, v{vT+5}")
        e(f"v_and_b32 v{b+3}, s{sHI}, v{vT+5}")
    rnd4(vZ)
    for r in range(4): e(f"v_add_f32 v{vZ+r}, s{sEPS}, v{vZ+r}")
    rnd4(vZ)
    for r in range(4): e(f"v_rcp_f32 v{vZ+r}, v{vZ+r}")
    for r in range(4):
        o = vX + 4*r
        for u in range(4):
            a, b = vA + 8*u + r, vA + 8*u + 4 + r
            t = vT + 2*(u & 1)
            e(f"v_cvt_pk_bf16_f32 v{o+u}, v{a}, v{b}")
            e(f"v_lshlrev_b32 v{t}, 16, v{o+u}")
            e(f"v_and_b32 v{t+1}, s{sHI}, v{o+u}")
            e(f"v_pk_mul_f32 v[{t}:{t+1}], v[{t}:{t+1}], v[{vZ+(r&~1)}:{vZ+(r&~1)+1}] op_sel:[0,{r&1}] op_sel_hi:[1,{r&1}]")
            e(f"v_cvt_pk_bf16_f32 v{o+u}, v{t}, v{t+1}")
        e(f"buffer_store_dwordx4 v[{o}:{o+3}], v{vOA}, s[{sO}:{sO+3}], s{sGO} offen offset:{256*r} {ST}")
    g.stamp()
    if opts.get("stamps"):
        e("s_waitcnt vmcnt(0)"); e("s_barrier")
        g.stamp()
        n = g.nst + 1
        e("s_waitcnt lgkmcnt(0)")
        e("v_cmp_eq_u32 vcc, 0, v0"); e("s_and_saveexec_b64 s[4:5], vcc"); e("s_cbranch_execz L_end")
        e(f"s_mul_i32 s6, s2, {n*8}"); e(f"s_add_u32 s6, s6, {STAMP_OFF}"); e("v_mov_b32 v1, s6")
        for i in range(g.nst):
            e(f"v_mov_b32 v2, s{70+2*i}"); e(f"v_mov_b32 v3, s{71+2*i}")
            e(f"buffer_store_dwordx2 v[2:3], v1, s[{sW}:{sW+3}], 0 offen offset:{8*i}"); e("s_nop 1")
        e(f"v_mov_b32 v2, s{sCNT}"); e(f"v_mov_b32 v3, 0")
        e(f"buffer_store_dwordx2 v[2:3], v1, s[{sW}:{sW+3}], 0 offen offset:{8*g.nst}")
    body = "\n".join(("    " + x if not x.endswith(":") else x) for x in g.t if x)
    lds = (L_END + 1023)//1024*1024
    return HEAD + f"""; @launch grid=(256,1,1) block=(1024,1,1) lds={lds}
.amdgcn_target "amdgcn-amd-amdhsa--gfx950"
.text
.globl {KN}
.p2align 8
.type {KN},@function
{KN}:
{body}
L_end:
    s_endpgm
.section .rodata,"a"
.p2align 6
.amdhsa_kernel {KN}
  .amdhsa_next_free_vgpr 128
  .amdhsa_next_free_sgpr 96
  .amdhsa_accum_offset 128
  .amdhsa_group_segment_fixed_size 0
  .amdhsa_kernarg_size 56
  .amdhsa_user_sgpr_count 2
  .amdhsa_user_sgpr_kernarg_segment_ptr 1
  .amdhsa_system_sgpr_workgroup_id_x 1
  .amdhsa_float_denorm_mode_32 3
.end_amdhsa_kernel
"""

if __name__ == "__main__":
    out = sys.argv[1]
    opts = {}
    for a in sys.argv[2:]:
        k, _, v = a.partition("=")
        opts[k] = v.replace("+", " ") if v else True
    open(out, "w").write(gen(opts))
```

```python
import sys, struct
KN = "standalone__linear_kernel_rfa__prompt_kernel"
TB = 32*2048*128*2
def f2u(x): return struct.unpack("<I", struct.pack("<f", x))[0]

HEAD = """; Kernarg layout for this problem (56 bytes, ptrs only, base s[0:1]):
"""

L_KQ = 0
L_V = 65536
L_PHI = 131072
L_OM = L_PHI + 8192
L_KVF = L_OM + 4096
L_END = L_KVF + 4096 + 512
SLOT = 16384
EPOCH_OFF = 8 << 20
STAMP_OFF = 128 << 20

class G:
    def __init__(s, opts):
        s.o = opts; s.t = []; s.nst = 0
    def e(s, x): s.t.append(x)
    def stamp(s):
        if s.o.get("stamps") or s.o.get("hold"):
            i = s.nst; s.nst += 1
            s.e(f"s_memrealtime s[{70+2*i}:{71+2*i}]")

def gen(opts):
    g = G(opts); e = g.e
    LD = opts.get("ld", "nt"); ST = opts.get("st", "")
    sQ, sK, sV, sO, sOM, sW = 24, 28, 32, 36, 40, 44
    sBLK, sWV, sLB, sGO, sT = 18, 19, 20, 21, 22
    sSC, sHI, sL2E, sEPS, sTAG, sEP, sSLOT, sCNT = 48, 50, 51, 52, 53, 54, 55, 23
    sM = 56
    sSEL = 64
    vL, vI, vG = 1, 2, 3
    vD = 4
    vF = 8
    vOA = 12
    vONE = 13
    vTAG = 14
    vT2 = 15
    vX = 16
    vOM = 32
    vP = 48
    vGm = 52
    vS = 56
    vT = 60
    vPH = 68
    vA = 72
    vB = 104
    vAC = 120
    vZ = 124
    g.stamp()
    e("s_cmp_ge_u32 s2, 256"); e("s_cbranch_scc1 L_end")
    e(f"s_load_dwordx2 s[{sK}:{sK+1}], s[0:1], 8")
    e(f"s_load_dwordx2 s[{sOM}:{sOM+1}], s[0:1], 24")
    e(f"s_load_dwordx2 s[{sV}:{sV+1}], s[0:1], 16")
    e(f"s_load_dwordx2 s[{sQ}:{sQ+1}], s[0:1], 0")
    e(f"s_load_dwordx2 s[{sO}:{sO+1}], s[0:1], 32")
    e(f"s_load_dwordx2 s[{sW}:{sW+1}], s[0:1], 48")
    e(f"s_and_b32 s3, s2, 7"); e(f"s_lshl_b32 s3, s3, 5"); e(f"s_lshr_b32 s{sBLK}, s2, 3"); e(f"s_add_u32 s{sBLK}, s{sBLK}, s3")
    e(f"v_lshrrev_b32 v{vT}, 6, v0")
    e(f"v_and_b32 v{vL}, 63, v0")
    e(f"v_readfirstlane_b32 s{sWV}, v{vT}")
    e(f"v_and_b32 v{vI}, 15, v{vL}")
    e(f"v_lshrrev_b32 v{vG}, 4, v{vL}")
    e(f"v_xor_b32 v{vT}, v{vI}, v{vG}")
    e(f"v_lshlrev_b32 v{vT}, 4, v{vT}")
    e(f"v_lshl_add_u32 v{vD}, v{vG}, 8, v{vT}")
    for b in range(1, 4): e(f"v_xor_b32 v{vD+b}, {64*b}, v{vD}")
    e(f"s_lshl_b32 s{sLB}, s{sWV}, 12")
    e(f"s_lshl_b32 s{sGO}, s{sBLK}, 16")
    e(f"s_add_u32 s{sGO}, s{sGO}, s{sLB}")
    for r, n in [(sK, TB), (sOM, 4096), (sV, TB), (sQ, TB), (sO, TB), (sW, 1 << 28)]:
        e(f"s_mov_b32 s{r+2}, {n}"); e(f"s_mov_b32 s{r+3}, 0x20000")
    def dma(srd, m0expr, soff, pol):
        e(m0expr)
        e("s_nop 0")
        for b in range(4):
            e(f"buffer_load_dwordx4 v{vD+b}, s[{srd}:{srd+3}], {soff} offen offset:{1024*b} {pol} lds")
    e(f"s_cmp_lg_u32 s{sWV}, 0")
    e("s_waitcnt lgkmcnt(0)")
    e("s_cbranch_scc1 L_noom")
    dma(sOM, f"s_mov_b32 m0, {L_OM}", "0", "")
    e("L_noom:")
    dma(sK, f"s_mov_b32 m0, s{sLB}", f"s{sGO}", LD)
    e(f"s_lshr_b32 s{sT}, s{sBLK}, 3"); e(f"s_lshl_b32 s{sT}, s{sT}, 8"); e(f"s_add_u32 s{sEP}, s{sT}, {EPOCH_OFF}")
    e(f"s_load_dword s{sTAG}, s[{sW}:{sW+1}], s{sEP}")
    e("s_barrier")
    dma(sV, f"s_add_u32 m0, s{sLB}, {L_V}", f"s{sGO}", LD)
    g.stamp()
    e(f"v_lshl_add_u32 v{vF}, v{vI}, 8, v{vT}")
    e(f"v_add_u32 v{vF}, s{sLB}, v{vF}")
    for b in range(1, 4): e(f"v_xor_b32 v{vF+b}, {64*b}, v{vF}")
    e(f"s_mov_b32 s{sSC}, {f2u(128.0**-0.25):#x}"); e(f"s_mov_b32 s{sSC+1}, s{sSC}")
    e(f"s_mov_b32 s{sHI}, 0xffff0000")
    e(f"s_mov_b32 s{sL2E}, {f2u(1.4426950408889634):#x}")
    e(f"s_mov_b32 s{sEPS}, {f2u(1e-6):#x}")
    for r in range(4):
        m = 0x1000010000100001 << r
        e(f"s_mov_b32 s{sM+2*r}, {m & 0xffffffff:#x}"); e(f"s_mov_b32 s{sM+2*r+1}, {m >> 32:#x}")
        e(f"s_mov_b32 s{sSEL+r}, {0x07060500 + r:#x}")
    e(f"v_mov_b32 v{vONE}, 1.0")
    e("s_waitcnt vmcnt(4)")
    def readx():
        for j in range(4): e(f"ds_read_b128 v[{vX+4*j}:{vX+4*j+3}], v{vF+j}")
    readx()
    e("s_waitcnt lgkmcnt(0)")
    e("s_barrier")
    g.stamp()
    dma(sQ, f"s_mov_b32 m0, s{sLB}", f"s{sGO}", LD)
    e(f"s_sub_u32 s{sT}, {L_OM}, s{sLB}")
    for j in range(4):
        e(f"v_add_u32 v{vT+j}, s{sT}, v{vF+j}")
    for j in range(4): e(f"ds_read_b128 v[{vOM+4*j}:{vOM+4*j+3}], v{vT+j}")
    e(f"s_add_u32 s{sTAG}, s{sTAG}, 0x01010101")
    def phi(first):
        for r in range(16):
            x = vX + r; t = vT + 2*(r & 1)
            e(f"v_lshlrev_b32 v{t}, 16, v{x}")
            e(f"v_and_b32 v{t+1}, s{sHI}, v{x}")
            e(f"v_pk_mul_f32 v[{t}:{t+1}], v[{t}:{t+1}], s[{sSC}:{sSC+1}]")
            e(f"v_cvt_pk_bf16_f32 v{x}, v{t}, v{t+1}")
        if first: e("s_waitcnt lgkmcnt(0)")
        e("s_nop 1")
        for j in range(4):
            c = "0" if j == 0 else f"v[{vGm}:{vGm+3}]"
            e(f"v_mfma_f32_16x16x32_bf16 v[{vGm}:{vGm+3}], v[{vX+4*j}:{vX+4*j+3}], v[{vX+4*j}:{vX+4*j+3}], {c}")
        for j in range(4):
            c = "0" if j == 0 else f"v[{vP}:{vP+3}]"
            e(f"v_mfma_f32_16x16x32_bf16 v[{vP}:{vP+3}], v[{vOM+4*j}:{vOM+4*j+3}], v[{vX+4*j}:{vX+4*j+3}], {c}")
        e("s_nop 4")
        e(f"v_cndmask_b32 v{vT}, 0, v{vGm}, s[{sM}:{sM+1}]")
        for r in range(1, 4):
            e(f"v_cndmask_b32 v{vT}, v{vT}, v{vGm+r}, s[{sM+2*r}:{sM+2*r+1}]")
        e("s_nop 1")
        e(f"v_mfma_f32_16x16x4_f32 v[{vS}:{vS+3}], v{vONE}, v{vT}, 0")
        e(f"v_cvt_pk_bf16_f32 v{vT+4}, v{vP}, v{vP+1}")
        e(f"v_cvt_pk_bf16_f32 v{vT+5}, v{vP+2}, v{vP+3}")
        e(f"v_lshlrev_b32 v{vP}, 16, v{vT+4}")
        e(f"v_and_b32 v{vP+1}, s{sHI}, v{vT+4}")
        e(f"v_lshlrev_b32 v{vP+2}, 16, v{vT+5}")
        e(f"v_and_b32 v{vP+3}, s{sHI}, v{vT+5}")
        e("s_nop 4")
        e(f"v_cvt_pk_bf16_f32 v{vT}, v{vS}, v{vS}")
        e(f"v_and_b32 v{vT}, s{sHI}, v{vT}")
        for r in range(4): e(f"v_fma_f32 v{vP+r}, v{vT}, -0.5, v{vP+r}")
        def rnd():
            e(f"v_cvt_pk_bf16_f32 v{vT+4}, v{vP}, v{vP+1}")
            e(f"v_cvt_pk_bf16_f32 v{vT+5}, v{vP+2}, v{vP+3}")
            e(f"v_lshlrev_b32 v{vP}, 16, v{vT+4}")
            e(f"v_and_b32 v{vP+1}, s{sHI}, v{vT+4}")
            e(f"v_lshlrev_b32 v{vP+2}, 16, v{vT+5}")
            e(f"v_and_b32 v{vP+3}, s{sHI}, v{vT+5}")
        rnd()
        for r in range(4): e(f"v_mul_f32 v{vP+r}, s{sL2E}, v{vP+r}")
        for r in range(4): e(f"v_exp_f32 v{vP+r}, v{vP+r}")
        e("s_nop 0")
        rnd()
        e(f"v_mov_b32 v{vT}, 0x3e800000")
        for r in range(4): e(f"v_fma_f32 v{vP+r}, v{vP+r}, v{vT}, s{sEPS}")
        e(f"v_cvt_pk_bf16_f32 v{vPH}, v{vP}, v{vP+1}")
        e(f"v_cvt_pk_bf16_f32 v{vPH+1}, v{vP+2}, v{vP+3}")
    phi(True)
    e(f"v_and_b32 v{vT}, 1, v{vI}"); e(f"v_lshlrev_b32 v{vT}, 8, v{vT}")
    e(f"v_lshrrev_b32 v{vT+1}, 1, v{vI}"); e(f"v_lshl_add_u32 v{vT}, v{vT+1}, 5, v{vT}")
    e(f"v_lshl_add_u32 v{vT}, v{vG}, 3, v{vT}")
    e(f"s_lshr_b32 s{sT}, s{sLB}, 3"); e(f"s_add_u32 s{sT}, s{sT}, {L_PHI}")
    e(f"v_add_u32 v{vT}, s{sT}, v{vT}")
    e(f"ds_write_b64 v{vT}, v[{vPH}:{vPH+1}]")
    vR, vC, vU = vT+2, vT+3, vT+4
    e(f"v_bfe_u32 v{vR}, v{vL}, 2, 2"); e(f"v_and_b32 v{vC}, 3, v{vL}")
    e(f"v_and_b32 v{vU}, 1, v{vG}"); e(f"v_lshl_add_u32 v{vU}, v{vU}, 2, v{vR}")
    e(f"v_lshrrev_b32 v{vT+5}, 1, v{vG}")
    e(f"v_lshl_add_u32 v{vT+6}, v{vT+5}, 4, v{vU}")
    e(f"v_lshlrev_b32 v{vT+6}, 5, v{vT+6}"); e(f"v_lshl_add_u32 v{vT+6}, v{vC}, 3, v{vT+6}")
    e(f"v_add_u32 v{vOA}, {L_PHI}, v{vT+6}")
    e(f"v_lshlrev_b32 v{vU}, 1, v{vU}")
    e(f"v_lshl_add_u32 v{vT+6}, v{vT+5}, 4, v{vU}")
    e(f"v_lshlrev_b32 v{vT+6}, 8, v{vT+6}")
    e(f"v_lshrrev_b32 v{vT+7}, 1, v{vC}")
    e(f"s_lshl_b32 s{sT}, s{sWV}, 1")
    e(f"v_or_b32 v{vT+7}, s{sT}, v{vT+7}")
    e(f"v_xor_b32 v{vT+7}, v{vT+7}, v{vU}")
    e(f"v_and_b32 v{vT+7}, 15, v{vT+7}")
    e(f"v_lshl_add_u32 v{vT+6}, v{vT+7}, 4, v{vT+6}")
    e(f"v_and_b32 v{vC}, 1, v{vC}")
    e(f"v_lshl_add_u32 v{vT+6}, v{vC}, 3, v{vT+6}")
    e(f"v_add_u32 v{vT2}, {L_V}, v{vT+6}")
    e(f"v_xor_b32 v{vTAG}, 16, v{vT2}")
    e(f"v_add_u32 v{vTAG}, 256, v{vTAG}")
    e("s_waitcnt lgkmcnt(0)")
    e("s_barrier")
    g.stamp()
    e(f"s_cmp_ge_u32 s{sWV}, 8")
    e("s_cbranch_scc1 L_skipA")
    for Gi in range(8):
        for h in range(2):
            e(f"ds_read_b64_tr_b16 v[{vA+4*Gi+2*h}:{vA+4*Gi+2*h+1}], v{vOA} offset:{Gi*1024 + h*256}")
    e(f"v_mov_b32 v{vT}, 0x3f803f80");
    for r in range(1, 4): e(f"v_mov_b32 v{vT+r}, v{vT}")
    e("s_waitcnt lgkmcnt(0)")
    for Gi in range(8):
        c = "0" if Gi == 0 else f"v[{vZ}:{vZ+3}]"
        e(f"v_mfma_f32_16x16x32_bf16 v[{vZ}:{vZ+3}], v[{vA+4*Gi}:{vA+4*Gi+3}], v[{vT}:{vT+3}], {c}")
    e("L_skipA:")
    e("s_waitcnt vmcnt(4)")
    e("s_barrier")
    g.stamp()
    e("s_cbranch_scc1 L_skipB")
    def breg(Gi): return (vB + 4*Gi) if Gi < 4 else (vX + 4*(Gi-4))
    for Gi in range(8):
        e(f"ds_read_b64_tr_b16 v[{breg(Gi)}:{breg(Gi)+1}], v{vT2} offset:{Gi*8192}")
        e(f"ds_read_b64_tr_b16 v[{breg(Gi)+2}:{breg(Gi)+3}], v{vTAG} offset:{Gi*8192}")
    for Gi in range(8):
        e(f"s_waitcnt lgkmcnt({14-2*Gi})")
        c = "0" if Gi == 0 else f"v[{vAC}:{vAC+3}]"
        e(f"v_mfma_f32_16x16x32_bf16 v[{vAC}:{vAC+3}], v[{vA+4*Gi}:{vA+4*Gi+3}], v[{breg(Gi)}:{breg(Gi)+3}], {c}")
    e(f"v_mov_b32 v{vTAG}, s{sTAG}")
    e(f"s_lshl_b32 s{sSLOT}, s{sBLK}, 14")
    e(f"s_lshr_b32 s{sT}, s{sLB}, 2")
    e(f"v_lshl_add_u32 v{vOA}, v{vL}, 4, s{sT}")
    e("s_nop 4")
    for r in range(4): e(f"v_perm_b32 v{vAC+r}, v{vAC+r}, v{vTAG}, s{sSEL+r}")
    e(f"buffer_store_dwordx4 v[{vAC}:{vAC+3}], v{vOA}, s[{sW}:{sW+3}], s{sSLOT} offen sc1")
    e(f"v_lshlrev_b32 v{vT2}, 4, v{vG}")
    e(f"v_add_u32 v{vT2}, 8192, v{vT2}")
    e(f"s_cmp_lg_u32 s{sWV}, 0")
    e("s_cbranch_scc1 L_noz")
    for r in range(4): e(f"v_perm_b32 v{vZ+r}, v{vZ+r}, v{vTAG}, s{sSEL+r}")
    e(f"s_mov_b64 exec, 0x0001000100010001") if False else None
    e(f"s_mov_b32 exec_lo, 0x00010001"); e(f"s_mov_b32 exec_hi, 0x00010001")
    e(f"buffer_store_dwordx4 v[{vZ}:{vZ+3}], v{vT2}, s[{sW}:{sW+3}], s{sSLOT} offen sc1")
    e("s_mov_b64 exec, -1")
    e("s_waitcnt vmcnt(2)")
    e("s_branch L_q")
    e("L_noz:")
    e("s_waitcnt vmcnt(1)")
    e("s_branch L_q")
    e("L_skipB:")
    e("s_waitcnt vmcnt(0)")
    e("L_q:")
    g.stamp()
    readx()
    e("s_waitcnt lgkmcnt(0)")
    phi(False)
    g.stamp()
    e(f"s_cmp_ge_u32 s{sWV}, 8")
    e("s_cbranch_scc1 L_skipP")
    e(f"s_and_b32 s{sSLOT}, s{sSLOT}, {~(8*SLOT-1) & 0xffffffff:#x}")
    for r in range(4):
        e(f"s_bfe_u32 s{sSEL+r}, s{sTAG}, {(8<<16) | (8*r):#x}")
    e(f"s_mov_b32 s{sCNT}, 0")
    def poll(lbl, voff, dst):
        e(f"{lbl}:")
        for j in range(8):
            e(f"s_add_u32 s{sT}, s{sSLOT}, {j*SLOT}")
            e(f"buffer_load_dwordx4 v[{vA+4*j}:{vA+4*j+3}], v{voff}, s[{sW}:{sW+3}], s{sT} offen sc1")
        for j in range(8):
            e(f"s_waitcnt vmcnt({7-j})")
            for r in range(4): e(f"v_xor_b32 v{vA+4*j+r}, s{sSEL+r}, v{vA+4*j+r}")
            if j == 0:
                e(f"v_or_b32 v{vT}, v{vA}, v{vA+1}")
                e(f"v_or3_b32 v{vT}, v{vA+2}, v{vA+3}, v{vT}")
            else:
                e(f"v_or3_b32 v{vT}, v{vA+4*j}, v{vA+4*j+1}, v{vT}")
                e(f"v_or3_b32 v{vT}, v{vA+4*j+2}, v{vA+4*j+3}, v{vT}")
                e(f"v_pk_add_f32 v[{vA}:{vA+1}], v[{vA}:{vA+1}], v[{vA+4*j}:{vA+4*j+1}]")
                e(f"v_pk_add_f32 v[{vA+2}:{vA+3}], v[{vA+2}:{vA+3}], v[{vA+4*j+2}:{vA+4*j+3}]")
        e(f"v_and_b32 v{vT}, 0xff, v{vT}")
        e(f"v_cmp_ne_u32 vcc, 0, v{vT}")
        e(f"s_add_u32 s{sCNT}, s{sCNT}, 1")
        e(f"s_cmp_gt_u32 s{sCNT}, 0x40000")
        e(f"s_cbranch_scc1 {lbl}_x")
        e(f"s_cbranch_vccnz {lbl}")
        e(f"{lbl}_x:")
        e(f"v_cvt_pk_bf16_f32 v{dst}, v{vA}, v{vA+1}")
        e(f"v_cvt_pk_bf16_f32 v{dst+1}, v{vA+2}, v{vA+3}")
    poll("L_poll", vOA, vT+2)
    e(f"v_bfe_u32 v{vT+4}, v{vI}, 1, 2"); e(f"v_lshlrev_b32 v{vT+4}, 10, v{vT+4}")
    e(f"v_lshl_add_u32 v{vT+4}, v{vG}, 8, v{vT+4}")
    e(f"v_lshrrev_b32 v{vT+5}, 3, v{vI}"); e(f"v_lshl_add_u32 v{vT+4}, v{vT+5}, 4, v{vT+4}")
    e(f"v_and_b32 v{vT+5}, 1, v{vI}"); e(f"v_lshl_add_u32 v{vT+4}, v{vT+5}, 3, v{vT+4}")
    e(f"s_lshl_b32 s{sT}, s{sWV}, 5"); e(f"s_add_u32 s{sT}, s{sT}, {L_KVF}")
    e(f"v_add_u32 v{vT+4}, s{sT}, v{vT+4}")
    e(f"ds_write_b64 v{vT+4}, v[{vT+2}:{vT+3}]")
    e(f"s_cmp_lg_u32 s{sWV}, 0")
    e("s_cbranch_scc1 L_skipP")
    poll("L_pollz", vT2, vT+2)
    e(f"v_lshlrev_b32 v{vT+4}, 3, v{vL}")
    e(f"v_add_u32 v{vT+4}, {L_KVF+4096}, v{vT+4}")
    e(f"ds_write_b64 v{vT+4}, v[{vT+2}:{vT+3}]")
    e(f"s_and_b32 s{sT}, s{sBLK}, 7")
    e(f"s_cbranch_scc1 L_skipP")
    e(f"v_mov_b32 v{vT+4}, s{sEP}")
    e(f"buffer_store_dword v{vTAG}, v{vT+4}, s[{sW}:{sW+3}], 0 offen")
    e("L_skipP:")
    e(f"v_lshlrev_b32 v{vT}, 4, v{vL}")
    e(f"v_add_u32 v{vT}, {L_KVF}, v{vT}")
    e(f"v_lshlrev_b32 v{vT+1}, 3, v{vL}")
    e(f"v_add_u32 v{vT+1}, {L_KVF+4096}, v{vT+1}")
    e("s_waitcnt lgkmcnt(0)")
    e("s_barrier")
    g.stamp()
    e(f"ds_read_b64 v[{vAC}:{vAC+1}], v{vT+1}")
    for u in range(4): e(f"ds_read_b128 v[{vB+4*u}:{vB+4*u+3}], v{vT} offset:{1024*u}")
    e(f"v_lshlrev_b32 v{vOA}, 4, v{vI}"); e(f"v_lshl_add_u32 v{vOA}, v{vG}, 10, v{vOA}")
    e("s_waitcnt lgkmcnt(4)")
    e(f"v_mfma_f32_16x16x16_bf16 v[{vZ}:{vZ+3}], v[{vPH}:{vPH+1}], v[{vAC}:{vAC+1}], 0")
    for t in range(8):
        if t % 2 == 0: e(f"s_waitcnt lgkmcnt({3 - t//2})")
        e(f"v_mfma_f32_16x16x16_bf16 v[{vA+4*t}:{vA+4*t+3}], v[{vPH}:{vPH+1}], v[{vB+2*t}:{vB+2*t+1}], 0")
    def rnd4(b):
        e(f"v_cvt_pk_bf16_f32 v{vT+4}, v{b}, v{b+1}")
        e(f"v_cvt_pk_bf16_f32 v{vT+5}, v{b+2}, v{b+3}")
        e(f"v_lshlrev_b32 v{b}, 16, v{vT+4}")
        e(f"v_and_b32 v{b+1}, s{sHI}, v{vT+4}")
        e(f"v_lshlrev_b32 v{b+2}, 16, v{vT+5}")
        e(f"v_and_b32 v{b+3}, s{sHI}, v{vT+5}")
    rnd4(vZ)
    for r in range(4): e(f"v_add_f32 v{vZ+r}, s{sEPS}, v{vZ+r}")
    rnd4(vZ)
    for r in range(4): e(f"v_rcp_f32 v{vZ+r}, v{vZ+r}")
    for r in range(4):
        o = vX + 4*r
        for u in range(4):
            a, b = vA + 8*u + r, vA + 8*u + 4 + r
            t = vT + 2*(u & 1)
            e(f"v_cvt_pk_bf16_f32 v{o+u}, v{a}, v{b}")
            e(f"v_lshlrev_b32 v{t}, 16, v{o+u}")
            e(f"v_and_b32 v{t+1}, s{sHI}, v{o+u}")
            e(f"v_pk_mul_f32 v[{t}:{t+1}], v[{t}:{t+1}], v[{vZ+(r&~1)}:{vZ+(r&~1)+1}] op_sel:[0,{r&1}] op_sel_hi:[1,{r&1}]")
            e(f"v_cvt_pk_bf16_f32 v{o+u}, v{t}, v{t+1}")
        e(f"buffer_store_dwordx4 v[{o}:{o+3}], v{vOA}, s[{sO}:{sO+3}], s{sGO} offen offset:{256*r} {ST}")
    g.stamp()
    if opts.get("hold"):
        e("s_waitcnt vmcnt(0)"); e("s_barrier")
        g.stamp()
        e("s_waitcnt lgkmcnt(0)")
        e(f"s_cmp_lg_u32 s{sWV}, 0"); e("s_cbranch_scc1 L_end")
        if opts.get("holdwg"):
            e(f"s_cmp_lg_u32 s2, {int(opts['holdwg'])}"); e("s_cbranch_scc1 L_end")
        k = int(opts.get("holdk", 0))
        e(f"s_add_u32 s4, s{70+2*k}, {int(opts['hold'])}")
        e("L_hold:")
        e("s_memrealtime s[6:7]"); e("s_waitcnt lgkmcnt(0)")
        e("s_sub_u32 s6, s6, s4"); e("s_cmp_lt_i32 s6, 0"); e("s_cbranch_scc1 L_hold")
    elif opts.get("stamps"):
        e("s_waitcnt vmcnt(0)"); e("s_barrier")
        g.stamp()
        n = g.nst + 1
        e("s_waitcnt lgkmcnt(0)")
        e("v_cmp_eq_u32 vcc, 0, v0"); e("s_and_saveexec_b64 s[4:5], vcc"); e("s_cbranch_execz L_end")
        e(f"s_mul_i32 s6, s2, {n*8}"); e(f"s_add_u32 s6, s6, {STAMP_OFF}"); e("v_mov_b32 v1, s6")
        for i in range(g.nst):
            e(f"v_mov_b32 v2, s{70+2*i}"); e(f"v_mov_b32 v3, s{71+2*i}")
            e(f"buffer_store_dwordx2 v[2:3], v1, s[{sW}:{sW+3}], 0 offen offset:{8*i}"); e("s_nop 1")
        e(f"v_mov_b32 v2, s{sCNT}"); e(f"v_mov_b32 v3, 0")
        e(f"buffer_store_dwordx2 v[2:3], v1, s[{sW}:{sW+3}], 0 offen offset:{8*g.nst}")
    body = "\n".join(("    " + x if not x.endswith(":") else x) for x in g.t if x)
    lds = (L_END + 1023)//1024*1024
    return HEAD + f"""; @launch grid=(256,1,1) block=(1024,1,1) lds={lds}
.amdgcn_target "amdgcn-amd-amdhsa--gfx950"
.text
.globl {KN}
.p2align 8
.type {KN},@function
{KN}:
{body}
L_end:
    s_endpgm
.section .rodata,"a"
.p2align 6
.amdhsa_kernel {KN}
  .amdhsa_next_free_vgpr 128
  .amdhsa_next_free_sgpr 96
  .amdhsa_accum_offset 128
  .amdhsa_group_segment_fixed_size 0
  .amdhsa_kernarg_size 56
  .amdhsa_user_sgpr_count 2
  .amdhsa_user_sgpr_kernarg_segment_ptr 1
  .amdhsa_system_sgpr_workgroup_id_x 1
  .amdhsa_float_denorm_mode_32 3
.end_amdhsa_kernel
"""

if __name__ == "__main__":
    out = sys.argv[1]
    opts = {}
    for a in sys.argv[2:]:
        k, _, v = a.partition("=")
        opts[k] = ("" if v == "none" else v.replace("+", " ")) if v else True
    open(out, "w").write(gen(opts))
```

```python
import sys, struct
KN = "standalone__linear_kernel_rfa__prompt_kernel"
TB = 32*2048*128*2
def f2u(x): return struct.unpack("<I", struct.pack("<f", x))[0]

HEAD = """; Kernarg layout for this problem (56 bytes, ptrs only, base s[0:1]):
"""

L_KQ = 0
L_V = 65536
L_PHI = 131072
L_OM = L_PHI + 8192
L_KVF = L_OM + 4096
L_CNT = L_KVF + 4096 + 512
L_END = L_CNT + 64
SLOT = 16384
EPOCH_IN_SLOT = 12288
STAMP_OFF = 128 << 20
NH = 7

class G:
    def __init__(s, opts):
        s.o = opts; s.t = []; s.nst = 0
    def e(s, x): s.t.append(x)
    def stamp(s):
        if s.o.get("stamps") or s.o.get("hold"):
            i = s.nst; s.nst += 1
            s.e(f"s_memrealtime s[{70+2*i}:{71+2*i}]")

def gen(opts):
    g = G(opts); e = g.e
    LD = opts.get("ld", "nt"); ST = opts.get("st", "nt")
    SW = int(opts.get("stampwave", 8))
    sQ, sK, sV, sO, sOM, sW = 24, 28, 32, 36, 40, 44
    sBLK, sWV, sLB, sGO, sT, sCNT = 18, 19, 20, 21, 22, 23
    sSC, sHI, sL2E, sEPS, sTAG, sEP, sSLOT = 48, 50, 51, 52, 53, 54, 55
    sM = 56
    sN = 64
    sRET = 68
    vL, vI, vG = 1, 2, 3
    vD = 4
    vF = 8
    vOA, vONE, vB0, vB1 = 12, 13, 14, 15
    vX = 16
    vOM = 32
    vP = 48; vGm = 52; vS = 56
    vT = 60
    vPH = 68
    vXO = 70
    vKW = 71
    vA = 72
    vB = 104
    vAC = 120; vZ = 124
    g.stamp()
    e(f"s_load_dwordx2 s[{sK}:{sK+1}], s[0:1], 8")
    e(f"s_load_dwordx2 s[{sOM}:{sOM+1}], s[0:1], 24")
    e(f"s_load_dwordx2 s[{sV}:{sV+1}], s[0:1], 16")
    e(f"s_load_dwordx2 s[{sW}:{sW+1}], s[0:1], 48")
    e(f"s_load_dwordx2 s[{sQ}:{sQ+1}], s[0:1], 0")
    e(f"s_load_dwordx2 s[{sO}:{sO+1}], s[0:1], 32")
    e("s_cmp_ge_u32 s2, 256"); e("s_cbranch_scc1 L_end")
    e(f"v_lshrrev_b32 v{vT}, 6, v0")
    e(f"v_and_b32 v{vL}, 63, v0")
    e(f"v_readfirstlane_b32 s{sWV}, v{vT}")
    e(f"s_and_b32 s3, s2, 7"); e(f"s_lshl_b32 s3, s3, 5"); e(f"s_lshr_b32 s{sBLK}, s2, 3"); e(f"s_add_u32 s{sBLK}, s{sBLK}, s3")
    e(f"v_and_b32 v{vI}, 15, v{vL}")
    e(f"v_lshrrev_b32 v{vG}, 4, v{vL}")
    e(f"v_xor_b32 v{vT}, v{vI}, v{vG}")
    e(f"v_lshlrev_b32 v{vT}, 4, v{vT}")
    e(f"v_lshl_add_u32 v{vD}, v{vG}, 8, v{vT}")
    for b in range(1, 4): e(f"v_xor_b32 v{vD+b}, {64*b}, v{vD}")
    e(f"s_lshl_b32 s{sLB}, s{sWV}, 12")
    e(f"s_lshl_b32 s{sGO}, s{sBLK}, 16")
    e(f"s_add_u32 s{sGO}, s{sGO}, s{sLB}")
    for r, n in [(sK, TB), (sOM, 4096), (sV, TB), (sQ, TB), (sO, TB), (sW, 1 << 28)]:
        e(f"s_mov_b32 s{r+2}, {n}"); e(f"s_mov_b32 s{r+3}, 0x20000")
    e(f"s_lshl_b32 s{sSLOT}, s{sBLK}, 14")
    e(f"s_and_b32 s{sEP}, s{sSLOT}, {~(8*SLOT-1) & 0xffffffff:#x}")
    e(f"s_add_u32 s{sEP}, s{sEP}, {EPOCH_IN_SLOT}")
    def dma(srd, m0expr, soff, pol):
        if m0expr: e(m0expr); e("s_nop 0")
        for b in range(4):
            e(f"buffer_load_dwordx4 v{vD+b}, s[{srd}:{srd+3}], {soff} offen offset:{1024*b} {pol} lds")
    e(f"s_mov_b32 m0, s{sLB}")
    e(f"s_cmp_lg_u32 s{sWV}, 0")
    e("s_waitcnt lgkmcnt(0)")
    dma(sK, None, f"s{sGO}", LD)
    e(f"s_load_dword s{sTAG}, s[{sW}:{sW+1}], s{sEP}")
    e("s_cbranch_scc1 L_noom")
    dma(sOM, f"s_mov_b32 m0, {L_OM}", "0", "")
    if not opts.get("notouch"):
        e(f"buffer_load_dword v{vT+2}, v{vD}, s[{sW}:{sW+3}], s{sSLOT} offen")
        e(f"buffer_load_dword v{vT+3}, v{vD}, s[{sO}:{sO+3}], s{sGO} offen")
    e(f"v_mov_b32 v{vT+4}, {L_CNT}"); e(f"v_mov_b32 v{vT+5}, 0")
    e(f"ds_write_b32 v{vT+4}, v{vT+5}")
    e("s_waitcnt vmcnt(2) lgkmcnt(0)" if not opts.get("notouch") else "s_waitcnt vmcnt(0) lgkmcnt(0)")
    e("L_noom:")
    e(f"s_add_u32 m0, s{sLB}, {L_V}")
    e(f"s_cmp_ge_u32 s{sWV}, {NH}")
    e("s_cbranch_scc1 L_lowp")
    e("s_setprio 1")
    e("L_lowp:")
    e("s_barrier")
    dma(sV, None, f"s{sGO}", LD)
    e("s_setprio 0")
    g.stamp()
    e(f"v_lshl_add_u32 v{vF}, v{vI}, 8, v{vT}")
    e(f"v_add_u32 v{vT+4}, {L_OM}, v{vF}")
    for b in range(1, 4): e(f"v_xor_b32 v{vT+4+b}, {64*b}, v{vT+4}")
    for j in range(4): e(f"ds_read_b128 v[{vOM+4*j}:{vOM+4*j+3}], v{vT+4+j}")
    e(f"v_add_u32 v{vF}, s{sLB}, v{vF}")
    for b in range(1, 4): e(f"v_xor_b32 v{vF+b}, {64*b}, v{vF}")
    e(f"s_mov_b32 s{sSC}, {f2u(128.0**-0.25):#x}"); e(f"s_mov_b32 s{sSC+1}, s{sSC}")
    e(f"s_mov_b32 s{sHI}, 0xffff0000")
    e(f"s_mov_b32 s{sL2E}, {f2u(1.4426950408889634):#x}")
    e(f"s_mov_b32 s{sEPS}, {f2u(1e-6):#x}")
    for r in range(4):
        m = 0x1000010000100001 << r
        e(f"s_mov_b32 s{sM+2*r}, {m & 0xffffffff:#x}"); e(f"s_mov_b32 s{sM+2*r+1}, {m >> 32:#x}")
    e(f"v_mov_b32 v{vONE}, 1.0")
    e(f"v_lshlrev_b32 v{vXO}, 4, v{vL}")
    e("s_waitcnt vmcnt(4)")
    def readx():
        for j in range(4): e(f"ds_read_b128 v[{vX+4*j}:{vX+4*j+3}], v{vF+j}")
    readx()
    def rnd4(b):
        e(f"v_cvt_pk_bf16_f32 v{vT+4}, v{b}, v{b+1}")
        e(f"v_cvt_pk_bf16_f32 v{vT+5}, v{b+2}, v{b+3}")
        e(f"v_lshlrev_b32 v{b}, 16, v{vT+4}")
        e(f"v_and_b32 v{b+1}, s{sHI}, v{vT+4}")
        e(f"v_lshlrev_b32 v{b+2}, 16, v{vT+5}")
        e(f"v_and_b32 v{b+3}, s{sHI}, v{vT+5}")
    def phi():
        for j in range(4):
            e(f"s_waitcnt lgkmcnt({3-j})")
            x = vX + 4*j
            for r in range(4):
                e(f"v_lshlrev_b32 v{vT+2*r}, 16, v{x+r}")
                e(f"v_and_b32 v{vT+2*r+1}, s{sHI}, v{x+r}")
            for r in range(4):
                e(f"v_pk_mul_f32 v[{vT+2*r}:{vT+2*r+1}], v[{vT+2*r}:{vT+2*r+1}], s[{sSC}:{sSC+1}]")
            for r in range(4):
                e(f"v_cvt_pk_bf16_f32 v{x+r}, v{vT+2*r}, v{vT+2*r+1}")
            if j > 0:
                jj = j-1
                c = "0" if jj == 0 else f"v[{vGm}:{vGm+3}]"
                e(f"v_mfma_f32_16x16x32_bf16 v[{vGm}:{vGm+3}], v[{vX+4*jj}:{vX+4*jj+3}], v[{vX+4*jj}:{vX+4*jj+3}], {c}")
                c = "0" if jj == 0 else f"v[{vP}:{vP+3}]"
                e(f"v_mfma_f32_16x16x32_bf16 v[{vP}:{vP+3}], v[{vOM+4*jj}:{vOM+4*jj+3}], v[{vX+4*jj}:{vX+4*jj+3}], {c}")
        e(f"v_mfma_f32_16x16x32_bf16 v[{vGm}:{vGm+3}], v[{vX+12}:{vX+15}], v[{vX+12}:{vX+15}], v[{vGm}:{vGm+3}]")
        e(f"v_mfma_f32_16x16x32_bf16 v[{vP}:{vP+3}], v[{vOM+12}:{vOM+15}], v[{vX+12}:{vX+15}], v[{vP}:{vP+3}]")
        e("s_nop 6")
        e(f"v_cndmask_b32 v{vT}, 0, v{vGm}, s[{sM}:{sM+1}]")
        for r in range(1, 4):
            e(f"v_cndmask_b32 v{vT}, v{vT}, v{vGm+r}, s[{sM+2*r}:{sM+2*r+1}]")
        e(f"v_cvt_pk_bf16_f32 v{vT+4}, v{vP}, v{vP+1}")
        e(f"v_cvt_pk_bf16_f32 v{vT+5}, v{vP+2}, v{vP+3}")
        e(f"v_mfma_f32_16x16x4_f32 v[{vS}:{vS+3}], v{vONE}, v{vT}, 0")
        e(f"v_lshlrev_b32 v{vP}, 16, v{vT+4}")
        e(f"v_and_b32 v{vP+1}, s{sHI}, v{vT+4}")
        e(f"v_lshlrev_b32 v{vP+2}, 16, v{vT+5}")
        e(f"v_and_b32 v{vP+3}, s{sHI}, v{vT+5}")
        e(f"v_mov_b32 v{vT+6}, 0x3e800000")
        e("s_nop 4")
        e(f"v_cvt_pk_bf16_f32 v{vT}, v{vS}, v{vS}")
        e(f"v_and_b32 v{vT}, s{sHI}, v{vT}")
        for r in range(4): e(f"v_fma_f32 v{vP+r}, v{vT}, -0.5, v{vP+r}")
        rnd4(vP)
        for r in range(4): e(f"v_mul_f32 v{vP+r}, s{sL2E}, v{vP+r}")
        for r in range(4): e(f"v_exp_f32 v{vP+r}, v{vP+r}")
        e("s_nop 0")
        rnd4(vP)
        for r in range(4): e(f"v_fma_f32 v{vP+r}, v{vP+r}, v{vT+6}, s{sEPS}")
        e(f"v_cvt_pk_bf16_f32 v{vPH}, v{vP}, v{vP+1}")
        e(f"v_cvt_pk_bf16_f32 v{vPH+1}, v{vP+2}, v{vP+3}")
    e("s_waitcnt lgkmcnt(0)")
    g.stamp()
    phi()
    e(f"v_and_b32 v{vT}, 1, v{vI}"); e(f"v_lshlrev_b32 v{vT}, 8, v{vT}")
    e(f"v_lshrrev_b32 v{vT+1}, 1, v{vI}"); e(f"v_lshl_add_u32 v{vT}, v{vT+1}, 5, v{vT}")
    e(f"v_lshl_add_u32 v{vT}, v{vG}, 3, v{vT}")
    e(f"s_lshr_b32 s{sT}, s{sLB}, 3"); e(f"s_add_u32 s{sT}, s{sT}, {L_PHI}")
    e(f"v_add_u32 v{vT}, s{sT}, v{vT}")
    e(f"ds_write_b64 v{vT}, v[{vPH}:{vPH+1}]")
    e(f"s_mov_b32 m0, s{sLB}")
    e(f"s_cmp_lt_u32 s{sWV}, {NH}")
    e("s_cbranch_scc1 L_Lpath")
    vR, vC, vU = vT+2, vT+3, vT+4
    e(f"v_bfe_u32 v{vR}, v{vL}, 2, 2"); e(f"v_and_b32 v{vC}, 3, v{vL}")
    e(f"v_and_b32 v{vU}, 1, v{vG}"); e(f"v_lshl_add_u32 v{vU}, v{vU}, 2, v{vR}")
    e(f"v_lshrrev_b32 v{vT+5}, 1, v{vG}")
    e(f"v_lshl_add_u32 v{vT+6}, v{vT+5}, 4, v{vU}")
    e(f"v_lshlrev_b32 v{vT+6}, 5, v{vT+6}"); e(f"v_lshl_add_u32 v{vT+6}, v{vC}, 3, v{vT+6}")
    e(f"v_add_u32 v{vOA}, {L_PHI}, v{vT+6}")
    e(f"v_lshlrev_b32 v{vU}, 1, v{vU}")
    e(f"v_lshl_add_u32 v{vT+6}, v{vT+5}, 4, v{vU}")
    e(f"v_lshlrev_b32 v{vT+6}, 8, v{vT+6}")
    e(f"v_lshrrev_b32 v{vT+7}, 1, v{vC}")
    e(f"s_and_b32 s3, s{sWV}, 7")
    e(f"s_lshl_b32 s{sT}, s3, 1")
    e(f"v_or_b32 v{vT+7}, s{sT}, v{vT+7}")
    e(f"v_xor_b32 v{vT+7}, v{vT+7}, v{vU}")
    e(f"v_lshl_add_u32 v{vT+6}, v{vT+7}, 4, v{vT+6}")
    e(f"v_and_b32 v{vC}, 1, v{vC}")
    e(f"v_lshl_add_u32 v{vT+6}, v{vC}, 3, v{vT+6}")
    e(f"v_add_u32 v{vB0}, {L_V}, v{vT+6}")
    e(f"v_xor_b32 v{vB1}, 16, v{vB0}")
    e(f"v_add_u32 v{vB1}, 256, v{vB1}")
    e(f"v_bfe_u32 v{vT+4}, v{vI}, 1, 2"); e(f"v_lshlrev_b32 v{vT+4}, 10, v{vT+4}")
    e(f"v_lshl_add_u32 v{vT+4}, v{vG}, 8, v{vT+4}")
    e(f"v_lshrrev_b32 v{vT+5}, 3, v{vI}"); e(f"v_lshl_add_u32 v{vT+4}, v{vT+5}, 4, v{vT+4}")
    e(f"v_and_b32 v{vT+5}, 1, v{vI}"); e(f"v_lshl_add_u32 v{vT+4}, v{vT+5}, 3, v{vT+4}")
    e(f"s_lshl_b32 s{sT}, s3, 5"); e(f"s_add_u32 s{sT}, s{sT}, {L_KVF}")
    e(f"v_add_u32 v{vKW}, s{sT}, v{vT+4}")
    e(f"s_lshl_b32 s{sT}, s3, 10")
    e(f"v_add_u32 v{vXO}, s{sT}, v{vXO}")
    e(f"s_add_u32 s{sTAG}, s{sTAG}, 0x1111")
    for r in range(4):
        e(f"s_bfe_u32 s{sN+r}, s{sTAG}, {(4<<16) | (4*r):#x}")
    e("s_waitcnt lgkmcnt(0)")
    e("s_barrier")
    g.stamp()
    for Gi in range(8):
        for h in range(2):
            e(f"ds_read_b64_tr_b16 v[{vA+4*Gi+2*h}:{vA+4*Gi+2*h+1}], v{vOA} offset:{Gi*1024 + h*256}")
    e("s_waitcnt vmcnt(0)")
    dma(sQ, None, f"s{sGO}", LD)
    e("s_setprio 2")
    e(f"s_cmp_eq_u32 s{sWV}, 7")
    e("s_cbranch_scc1 L_zw")
    e("s_barrier")
    g.stamp()
    def breg(Gi): return (vB + 4*Gi) if Gi < 4 else (vX + 4*(Gi-4))
    for Gi in range(8):
        e(f"ds_read_b64_tr_b16 v[{breg(Gi)}:{breg(Gi)+1}], v{vB0} offset:{Gi*8192}")
        e(f"ds_read_b64_tr_b16 v[{breg(Gi)+2}:{breg(Gi)+3}], v{vB1} offset:{Gi*8192}")
    for Gi in range(8):
        e(f"s_waitcnt lgkmcnt({14-2*Gi})")
        c = "0" if Gi == 0 else f"v[{vAC}:{vAC+3}]"
        e(f"v_mfma_f32_16x16x32_bf16 v[{vAC}:{vAC+3}], v[{vA+4*Gi}:{vA+4*Gi+3}], v[{breg(Gi)}:{breg(Gi)+3}], {c}")
    e("s_nop 7")
    for r in range(4): e(f"v_bfi_b32 v{vAC+r}, 15, s{sN+r}, v{vAC+r}")
    e(f"buffer_store_dwordx4 v[{vAC}:{vAC+3}], v{vXO}, s[{sW}:{sW+3}], s{sSLOT} offen sc1")
    e("s_branch L_pub")
    e("L_zw:")
    e(f"v_mov_b32 v{vT}, 0x3f803f80")
    for r in range(1, 4): e(f"v_mov_b32 v{vT+r}, v{vT}")
    e(f"v_lshlrev_b32 v{vXO}, 4, v{vL}"); e(f"v_add_u32 v{vXO}, 8192, v{vXO}")
    e(f"v_lshlrev_b32 v{vKW}, 3, v{vL}"); e(f"v_add_u32 v{vKW}, {L_KVF+4096}, v{vKW}")
    e("s_waitcnt lgkmcnt(0)")
    for Gi in range(8):
        c = "0" if Gi == 0 else f"v[{vAC}:{vAC+3}]"
        e(f"v_mfma_f32_16x16x32_bf16 v[{vAC}:{vAC+3}], v[{vA+4*Gi}:{vA+4*Gi+3}], v[{vT}:{vT+3}], {c}")
    e("s_nop 7")
    for r in range(4): e(f"v_bfi_b32 v{vAC+r}, 15, s{sN+r}, v{vAC+r}")
    e(f"buffer_store_dwordx4 v[{vAC}:{vAC+3}], v{vXO}, s[{sW}:{sW+3}], s{sSLOT} offen sc1")
    e("s_barrier")
    e("L_pub:")
    e("s_barrier")
    g.stamp()
    e("s_waitcnt vmcnt(1)")
    e("s_branch L_q")
    for j in range(8):
        e(f"L_i{j}:")
        e(f"s_add_u32 s{sT}, s{sSLOT}, {j*SLOT}")
        e(f"buffer_load_dwordx4 v[{vA+4*j}:{vA+4*j+3}], v{vXO}, s[{sW}:{sW+3}], s{sT} offen sc1")
    e(f"s_setpc_b64 s[{sRET}:{sRET+1}]")
    e("L_Lpath:")
    e("s_waitcnt lgkmcnt(0)")
    e("s_barrier")
    e("s_waitcnt vmcnt(0)")
    e("s_barrier")
    e("s_barrier")
    dma(sQ, None, f"s{sGO}", LD)
    e("s_waitcnt vmcnt(0)")
    e("L_q:")
    g.stamp()
    readx()
    phi()
    g.stamp()
    e(f"s_cmp_lt_u32 s{sWV}, {NH}")
    e("s_cbranch_scc1 L_skipP")
    e(f"s_and_b32 s{sSLOT}, s{sSLOT}, {~(8*SLOT-1) & 0xffffffff:#x}")
    e(f"s_mov_b32 s{sCNT}, 0")
    e(f"s_call_b64 s[{sRET}:{sRET+1}], L_i0")
    for j in range(8):
        a = vA + 4*j
        e(f"L_c{j}:")
        e(f"s_waitcnt vmcnt({7-j})")
        for r in range(4): e(f"v_xor_b32 v{a+r}, s{sN+r}, v{a+r}")
        e(f"v_or_b32 v{vT}, v{a}, v{a+1}")
        e(f"v_or3_b32 v{vT}, v{a+2}, v{a+3}, v{vT}")
        e(f"v_and_b32 v{vT}, 15, v{vT}")
        e(f"v_cmp_ne_u32 vcc, 0, v{vT}")
        e(f"s_cbranch_vccz L_ok{j}")
        e(f"s_add_u32 s{sCNT}, s{sCNT}, 1")
        e(f"s_cmp_gt_u32 s{sCNT}, 0x40000")
        e(f"s_cbranch_scc1 L_ok{j}")
        e(f"s_call_b64 s[{sRET}:{sRET+1}], L_i{j}")
        e(f"s_branch L_c{j}")
        e(f"L_ok{j}:")
        if j > 0:
            e(f"v_pk_add_f32 v[{vA}:{vA+1}], v[{vA}:{vA+1}], v[{a}:{a+1}]")
            e(f"v_pk_add_f32 v[{vA+2}:{vA+3}], v[{vA+2}:{vA+3}], v[{a+2}:{a+3}]")
    e(f"v_cvt_pk_bf16_f32 v{vT+2}, v{vA}, v{vA+1}")
    e(f"v_cvt_pk_bf16_f32 v{vT+3}, v{vA+2}, v{vA+3}")
    e(f"v_mov_b32 v{vT+4}, {L_CNT}"); e(f"v_mov_b32 v{vT+5}, 1")
    e(f"ds_write_b64 v{vKW}, v[{vT+2}:{vT+3}]")
    e("s_mov_b64 exec, 1")
    e(f"ds_add_u32 v{vT+4}, v{vT+5}")
    e(f"s_and_b32 s{sT}, s{sBLK}, 7")
    e(f"s_lshl_b32 s{sT}, s{sT}, 4")
    e(f"s_or_b32 s{sT}, s{sT}, s{sWV}")
    e(f"s_cmp_lg_u32 s{sT}, 7")
    e(f"s_cbranch_scc1 L_nobump")
    e(f"v_mov_b32 v{vT+4}, s{sEP}"); e(f"v_mov_b32 v{vT+5}, s{sTAG}")
    e(f"buffer_store_dword v{vT+5}, v{vT+4}, s[{sW}:{sW+3}], 0 offen")
    e("L_nobump:")
    e("s_mov_b64 exec, -1")
    e("s_setprio 0")
    g.stamp()
    e("L_skipP:")
    e(f"v_lshlrev_b32 v{vT}, 4, v{vL}")
    e(f"v_add_u32 v{vT}, {L_KVF}, v{vT}")
    e(f"v_lshlrev_b32 v{vT+1}, 3, v{vL}")
    e(f"v_add_u32 v{vT+1}, {L_KVF+4096}, v{vT+1}")
    e(f"v_lshlrev_b32 v{vOA}, 4, v{vI}"); e(f"v_lshl_add_u32 v{vOA}, v{vG}, 10, v{vOA}")
    e(f"v_mov_b32 v{vT+4}, {L_CNT}")
    e("L_spin:")
    e(f"ds_read_b32 v{vT+5}, v{vT+4}")
    e("s_waitcnt lgkmcnt(0)")
    e(f"v_cmp_ne_u32 vcc, 9, v{vT+5}")
    e("s_cbranch_vccz L_go")
    e("s_sleep 1")
    e("s_branch L_spin")
    e("L_go:")
    g.stamp()
    e(f"ds_read_b64 v[{vAC}:{vAC+1}], v{vT+1}")
    for u in range(4): e(f"ds_read_b128 v[{vB+4*u}:{vB+4*u+3}], v{vT} offset:{1024*u}")
    e("s_waitcnt lgkmcnt(4)")
    e(f"v_mfma_f32_16x16x16_bf16 v[{vZ}:{vZ+3}], v[{vPH}:{vPH+1}], v[{vAC}:{vAC+1}], 0")
    for t in range(8):
        if t % 2 == 0: e(f"s_waitcnt lgkmcnt({3 - t//2})")
        e(f"v_mfma_f32_16x16x16_bf16 v[{vA+4*t}:{vA+4*t+3}], v[{vPH}:{vPH+1}], v[{vB+2*t}:{vB+2*t+1}], 0")
    rnd4(vZ)
    for r in range(4): e(f"v_add_f32 v{vZ+r}, s{sEPS}, v{vZ+r}")
    rnd4(vZ)
    for r in range(4): e(f"v_rcp_f32 v{vZ+r}, v{vZ+r}")
    for r in range(4):
        o = vX + 4*r
        for u in range(4): e(f"v_cvt_pk_bf16_f32 v{o+u}, v{vA+8*u+r}, v{vA+8*u+4+r}")
        for u in range(4):
            e(f"v_lshlrev_b32 v{vT+2*u}, 16, v{o+u}")
            e(f"v_and_b32 v{vT+2*u+1}, s{sHI}, v{o+u}")
        for u in range(4):
            e(f"v_pk_mul_f32 v[{vT+2*u}:{vT+2*u+1}], v[{vT+2*u}:{vT+2*u+1}], v[{vZ+(r&~1)}:{vZ+(r&~1)+1}] op_sel:[0,{r&1}] op_sel_hi:[1,{r&1}]")
        for u in range(4): e(f"v_cvt_pk_bf16_f32 v{o+u}, v{vT+2*u}, v{vT+2*u+1}")
        e(f"buffer_store_dwordx4 v[{o}:{o+3}], v{vOA}, s[{sO}:{sO+3}], s{sGO} offen offset:{256*r} {ST}")
    g.stamp()
    if opts.get("hold"):
        e("s_waitcnt vmcnt(0)"); e("s_barrier")
        g.stamp()
        e("s_waitcnt lgkmcnt(0)")
        e(f"s_cmp_lg_u32 s{sWV}, {SW}"); e("s_cbranch_scc1 L_end")
        k = int(opts.get("holdk", 0))
        e(f"s_add_u32 s4, s{70+2*k}, {int(opts['hold'])}")
        e("L_hold:")
        e("s_memrealtime s[6:7]"); e("s_waitcnt lgkmcnt(0)")
        e("s_sub_u32 s6, s6, s4"); e("s_cmp_lt_i32 s6, 0"); e("s_cbranch_scc1 L_hold")
    elif opts.get("stamps"):
        e("s_waitcnt vmcnt(0)"); e("s_barrier")
        g.stamp()
        n = g.nst + 1
        e("s_waitcnt lgkmcnt(0)")
        e(f"s_cmp_lg_u32 s{sWV}, {SW}"); e("s_cbranch_scc1 L_end")
        e("s_mov_b64 exec, 1")
        e(f"s_mul_i32 s6, s2, {n*8}"); e(f"s_add_u32 s6, s6, {STAMP_OFF}"); e("v_mov_b32 v1, s6")
        for i in range(g.nst):
            e(f"v_mov_b32 v2, s{70+2*i}"); e(f"v_mov_b32 v3, s{71+2*i}")
            e(f"buffer_store_dwordx2 v[2:3], v1, s[{sW}:{sW+3}], 0 offen offset:{8*i}"); e("s_nop 1")
        e(f"s_mul_i32 s7, s{sCNT}, 100"); e("s_add_u32 s7, s7, s70"); e("s_addc_u32 s8, s71, 0")
        e(f"v_mov_b32 v2, s7"); e(f"v_mov_b32 v3, s8")
        e(f"buffer_store_dwordx2 v[2:3], v1, s[{sW}:{sW+3}], 0 offen offset:{8*g.nst}")
    body = "\n".join(("    " + x if not x.endswith(":") else x) for x in g.t if x)
    lds = (L_END + 1023)//1024*1024
    return HEAD + f"""; @launch grid=(256,1,1) block=(1024,1,1) lds={lds}
.amdgcn_target "amdgcn-amd-amdhsa--gfx950"
.text
.globl {KN}
.p2align 8
.type {KN},@function
{KN}:
{body}
L_end:
    s_endpgm
.section .rodata,"a"
.p2align 6
.amdhsa_kernel {KN}
  .amdhsa_next_free_vgpr 128
  .amdhsa_next_free_sgpr 96
  .amdhsa_accum_offset 128
  .amdhsa_group_segment_fixed_size 0
  .amdhsa_kernarg_size 56
  .amdhsa_user_sgpr_count 2
  .amdhsa_user_sgpr_kernarg_segment_ptr 1
  .amdhsa_system_sgpr_workgroup_id_x 1
  .amdhsa_float_denorm_mode_32 3
.end_amdhsa_kernel
"""

if __name__ == "__main__":
    out = sys.argv[1]
    opts = {}
    for a in sys.argv[2:]:
        k, _, v = a.partition("=")
        opts[k] = ("" if v == "none" else v.replace("+", " ")) if v else True
    open(out, "w").write(gen(opts))
```

```python
import sys, struct
KN = "standalone__linear_kernel_rfa__prompt_kernel"
TB = 32*2048*128*2
def f2u(x): return struct.unpack("<I", struct.pack("<f", x))[0]

HEAD = """; Kernarg layout for this problem (56 bytes, ptrs only, base s[0:1]):
"""

L_KQ = 0
L_V = 65536
L_PHI = 131072
L_OM = L_PHI + 8192
L_KVF = L_OM + 4096
L_CNT = L_KVF + 4096 + 512
L_END = L_CNT + 64
SLOT = 16384
EPOCH_IN_SLOT = 12288
STAMP_OFF = 128 << 20
NH = 7

class G:
    def __init__(s, opts):
        s.o = opts; s.t = []; s.nst = 0
    def e(s, x): s.t.append(x)
    def stamp(s):
        if s.o.get("stamps") or s.o.get("hold"):
            i = s.nst; s.nst += 1
            s.e(f"s_memrealtime s[{70+2*i}:{71+2*i}]")

def gen(opts):
    g = G(opts); e = g.e
    LD = opts.get("ld", "nt"); ST = opts.get("st", "nt")
    PUB = opts.get("pub", "sc1"); POL = opts.get("pol", "sc1")
    SW = int(opts.get("stampwave", 8))
    sQ, sK, sV, sO, sOM, sW = 24, 28, 32, 36, 40, 44
    sBLK, sWV, sLB, sGO, sT, sCNT = 18, 19, 20, 21, 22, 23
    sSC, sHI, sL2E, sEPS, sTAG, sEP, sSLOT = 48, 50, 51, 52, 53, 54, 55
    sM = 56
    sN = 64
    sRET = 68
    vL, vI, vG = 1, 2, 3
    vD = 4
    vF = 8
    vOA, vONE, vB0, vB1 = 12, 13, 14, 15
    vX = 16
    vOM = 32
    vP = 48; vGm = 52; vS = 56
    vT = 60
    vPH = 68
    vXO = 70
    vKW = 71
    vA = 72
    vB = 104
    vAC = 120; vZ = 124
    g.stamp()
    e(f"s_load_dwordx2 s[{sK}:{sK+1}], s[0:1], 8")
    e(f"s_load_dwordx2 s[{sOM}:{sOM+1}], s[0:1], 24")
    e(f"s_load_dwordx2 s[{sV}:{sV+1}], s[0:1], 16")
    e(f"s_load_dwordx2 s[{sW}:{sW+1}], s[0:1], 48")
    e(f"s_load_dwordx2 s[{sQ}:{sQ+1}], s[0:1], 0")
    e(f"s_load_dwordx2 s[{sO}:{sO+1}], s[0:1], 32")
    e("s_cmp_ge_u32 s2, 256"); e("s_cbranch_scc1 L_end")
    e(f"v_lshrrev_b32 v{vT}, 6, v0")
    e(f"v_and_b32 v{vL}, 63, v0")
    e(f"v_readfirstlane_b32 s{sWV}, v{vT}")
    e(f"s_and_b32 s3, s2, 7"); e(f"s_lshl_b32 s3, s3, 5"); e(f"s_lshr_b32 s{sBLK}, s2, 3"); e(f"s_add_u32 s{sBLK}, s{sBLK}, s3")
    e(f"v_and_b32 v{vI}, 15, v{vL}")
    e(f"v_lshrrev_b32 v{vG}, 4, v{vL}")
    e(f"v_xor_b32 v{vT}, v{vI}, v{vG}")
    e(f"v_lshlrev_b32 v{vT}, 4, v{vT}")
    e(f"v_lshl_add_u32 v{vD}, v{vG}, 8, v{vT}")
    for b in range(1, 4): e(f"v_xor_b32 v{vD+b}, {64*b}, v{vD}")
    e(f"s_lshl_b32 s{sLB}, s{sWV}, 12")
    e(f"s_lshl_b32 s{sGO}, s{sBLK}, 16")
    e(f"s_add_u32 s{sGO}, s{sGO}, s{sLB}")
    for r, n in [(sK, TB), (sOM, 4096), (sV, TB), (sQ, TB), (sO, TB), (sW, 1 << 28)]:
        e(f"s_mov_b32 s{r+2}, {n}"); e(f"s_mov_b32 s{r+3}, 0x20000")
    e(f"s_lshl_b32 s{sSLOT}, s{sBLK}, 14")
    e(f"s_and_b32 s{sEP}, s{sSLOT}, {~(8*SLOT-1) & 0xffffffff:#x}")
    e(f"s_add_u32 s{sEP}, s{sEP}, {EPOCH_IN_SLOT}")
    def dma(srd, m0expr, soff, pol):
        if m0expr: e(m0expr); e("s_nop 0")
        for b in range(4):
            e(f"buffer_load_dwordx4 v{vD+b}, s[{srd}:{srd+3}], {soff} offen offset:{1024*b} {pol} lds")
    e(f"s_mov_b32 m0, s{sLB}")
    e(f"s_cmp_lg_u32 s{sWV}, 0")
    e("s_waitcnt lgkmcnt(0)")
    dma(sK, None, f"s{sGO}", LD)
    e(f"s_load_dword s{sTAG}, s[{sW}:{sW+1}], s{sEP}")
    e("s_cbranch_scc1 L_noom")
    dma(sOM, f"s_mov_b32 m0, {L_OM}", "0", "")
    if not opts.get("notouch"):
        e(f"buffer_load_dword v{vT+2}, v{vD}, s[{sW}:{sW+3}], s{sSLOT} offen")
        e(f"buffer_load_dword v{vT+3}, v{vD}, s[{sO}:{sO+3}], s{sGO} offen")
    e(f"v_mov_b32 v{vT+4}, {L_CNT}"); e(f"v_mov_b32 v{vT+5}, 0")
    e(f"ds_write_b32 v{vT+4}, v{vT+5}")
    e("s_waitcnt vmcnt(2) lgkmcnt(0)" if not opts.get("notouch") else "s_waitcnt vmcnt(0) lgkmcnt(0)")
    e("L_noom:")
    e(f"s_add_u32 m0, s{sLB}, {L_V}")
    e(f"s_cmp_ge_u32 s{sWV}, {NH}")
    e("s_cbranch_scc1 L_lowp")
    e("s_setprio 1")
    e("L_lowp:")
    e("s_barrier")
    dma(sV, None, f"s{sGO}", LD)
    e("s_setprio 0")
    g.stamp()
    e(f"v_lshl_add_u32 v{vF}, v{vI}, 8, v{vT}")
    e(f"v_add_u32 v{vT+4}, {L_OM}, v{vF}")
    for b in range(1, 4): e(f"v_xor_b32 v{vT+4+b}, {64*b}, v{vT+4}")
    for j in range(4): e(f"ds_read_b128 v[{vOM+4*j}:{vOM+4*j+3}], v{vT+4+j}")
    e(f"v_add_u32 v{vF}, s{sLB}, v{vF}")
    for b in range(1, 4): e(f"v_xor_b32 v{vF+b}, {64*b}, v{vF}")
    e(f"s_mov_b32 s{sSC}, {f2u(128.0**-0.25):#x}"); e(f"s_mov_b32 s{sSC+1}, s{sSC}")
    e(f"s_mov_b32 s{sHI}, 0xffff0000")
    e(f"s_mov_b32 s{sL2E}, {f2u(1.4426950408889634):#x}")
    e(f"s_mov_b32 s{sEPS}, {f2u(1e-6):#x}")
    for r in range(4):
        m = 0x1000010000100001 << r
        e(f"s_mov_b32 s{sM+2*r}, {m & 0xffffffff:#x}"); e(f"s_mov_b32 s{sM+2*r+1}, {m >> 32:#x}")
    e(f"v_mov_b32 v{vONE}, 1.0")
    e(f"v_lshlrev_b32 v{vXO}, 4, v{vL}")
    e("s_waitcnt vmcnt(4)")
    def readx():
        for j in range(4): e(f"ds_read_b128 v[{vX+4*j}:{vX+4*j+3}], v{vF+j}")
    readx()
    def rnd4(b):
        e(f"v_cvt_pk_bf16_f32 v{vT+4}, v{b}, v{b+1}")
        e(f"v_cvt_pk_bf16_f32 v{vT+5}, v{b+2}, v{b+3}")
        e(f"v_lshlrev_b32 v{b}, 16, v{vT+4}")
        e(f"v_and_b32 v{b+1}, s{sHI}, v{vT+4}")
        e(f"v_lshlrev_b32 v{b+2}, 16, v{vT+5}")
        e(f"v_and_b32 v{b+3}, s{sHI}, v{vT+5}")
    def phi():
        for j in range(4):
            e(f"s_waitcnt lgkmcnt({3-j})")
            x = vX + 4*j
            for r in range(4):
                e(f"v_lshlrev_b32 v{vT+2*r}, 16, v{x+r}")
                e(f"v_and_b32 v{vT+2*r+1}, s{sHI}, v{x+r}")
            for r in range(4):
                e(f"v_pk_mul_f32 v[{vT+2*r}:{vT+2*r+1}], v[{vT+2*r}:{vT+2*r+1}], s[{sSC}:{sSC+1}]")
            for r in range(4):
                e(f"v_cvt_pk_bf16_f32 v{x+r}, v{vT+2*r}, v{vT+2*r+1}")
            if j > 0:
                jj = j-1
                c = "0" if jj == 0 else f"v[{vGm}:{vGm+3}]"
                e(f"v_mfma_f32_16x16x32_bf16 v[{vGm}:{vGm+3}], v[{vX+4*jj}:{vX+4*jj+3}], v[{vX+4*jj}:{vX+4*jj+3}], {c}")
                c = "0" if jj == 0 else f"v[{vP}:{vP+3}]"
                e(f"v_mfma_f32_16x16x32_bf16 v[{vP}:{vP+3}], v[{vOM+4*jj}:{vOM+4*jj+3}], v[{vX+4*jj}:{vX+4*jj+3}], {c}")
        e(f"v_mfma_f32_16x16x32_bf16 v[{vGm}:{vGm+3}], v[{vX+12}:{vX+15}], v[{vX+12}:{vX+15}], v[{vGm}:{vGm+3}]")
        e(f"v_mfma_f32_16x16x32_bf16 v[{vP}:{vP+3}], v[{vOM+12}:{vOM+15}], v[{vX+12}:{vX+15}], v[{vP}:{vP+3}]")
        e("s_nop 6")
        e(f"v_cndmask_b32 v{vT}, 0, v{vGm}, s[{sM}:{sM+1}]")
        for r in range(1, 4):
            e(f"v_cndmask_b32 v{vT}, v{vT}, v{vGm+r}, s[{sM+2*r}:{sM+2*r+1}]")
        e(f"v_cvt_pk_bf16_f32 v{vT+4}, v{vP}, v{vP+1}")
        e(f"v_cvt_pk_bf16_f32 v{vT+5}, v{vP+2}, v{vP+3}")
        e(f"v_mfma_f32_16x16x4_f32 v[{vS}:{vS+3}], v{vONE}, v{vT}, 0")
        e(f"v_lshlrev_b32 v{vP}, 16, v{vT+4}")
        e(f"v_and_b32 v{vP+1}, s{sHI}, v{vT+4}")
        e(f"v_lshlrev_b32 v{vP+2}, 16, v{vT+5}")
        e(f"v_and_b32 v{vP+3}, s{sHI}, v{vT+5}")
        e(f"v_mov_b32 v{vT+6}, 0x3e800000")
        e("s_nop 4")
        e(f"v_cvt_pk_bf16_f32 v{vT}, v{vS}, v{vS}")
        e(f"v_and_b32 v{vT}, s{sHI}, v{vT}")
        for r in range(4): e(f"v_fma_f32 v{vP+r}, v{vT}, -0.5, v{vP+r}")
        rnd4(vP)
        for r in range(4): e(f"v_mul_f32 v{vP+r}, s{sL2E}, v{vP+r}")
        for r in range(4): e(f"v_exp_f32 v{vP+r}, v{vP+r}")
        e("s_nop 0")
        rnd4(vP)
        for r in range(4): e(f"v_fma_f32 v{vP+r}, v{vP+r}, v{vT+6}, s{sEPS}")
        e(f"v_cvt_pk_bf16_f32 v{vPH}, v{vP}, v{vP+1}")
        e(f"v_cvt_pk_bf16_f32 v{vPH+1}, v{vP+2}, v{vP+3}")
    e("s_waitcnt lgkmcnt(0)")
    g.stamp()
    e(f"s_call_b64 s[{sRET}:{sRET+1}], L_phi")
    e(f"v_and_b32 v{vT}, 1, v{vI}"); e(f"v_lshlrev_b32 v{vT}, 8, v{vT}")
    e(f"v_lshrrev_b32 v{vT+1}, 1, v{vI}"); e(f"v_lshl_add_u32 v{vT}, v{vT+1}, 5, v{vT}")
    e(f"v_lshl_add_u32 v{vT}, v{vG}, 3, v{vT}")
    e(f"s_lshr_b32 s{sT}, s{sLB}, 3"); e(f"s_add_u32 s{sT}, s{sT}, {L_PHI}")
    e(f"v_add_u32 v{vT}, s{sT}, v{vT}")
    e(f"ds_write_b64 v{vT}, v[{vPH}:{vPH+1}]")
    e(f"s_mov_b32 m0, s{sLB}")
    e(f"s_cmp_lt_u32 s{sWV}, {NH}")
    e("s_cbranch_scc1 L_Lpath")
    vR, vC, vU = vT+2, vT+3, vT+4
    e(f"v_bfe_u32 v{vR}, v{vL}, 2, 2"); e(f"v_and_b32 v{vC}, 3, v{vL}")
    e(f"v_and_b32 v{vU}, 1, v{vG}"); e(f"v_lshl_add_u32 v{vU}, v{vU}, 2, v{vR}")
    e(f"v_lshrrev_b32 v{vT+5}, 1, v{vG}")
    e(f"v_lshl_add_u32 v{vT+6}, v{vT+5}, 4, v{vU}")
    e(f"v_lshlrev_b32 v{vT+6}, 5, v{vT+6}"); e(f"v_lshl_add_u32 v{vT+6}, v{vC}, 3, v{vT+6}")
    e(f"v_add_u32 v{vOA}, {L_PHI}, v{vT+6}")
    e(f"v_lshlrev_b32 v{vU}, 1, v{vU}")
    e(f"v_lshl_add_u32 v{vT+6}, v{vT+5}, 4, v{vU}")
    e(f"v_lshlrev_b32 v{vT+6}, 8, v{vT+6}")
    e(f"v_lshrrev_b32 v{vT+7}, 1, v{vC}")
    e(f"s_and_b32 s3, s{sWV}, 7")
    e(f"s_lshl_b32 s{sT}, s3, 1")
    e(f"v_or_b32 v{vT+7}, s{sT}, v{vT+7}")
    e(f"v_xor_b32 v{vT+7}, v{vT+7}, v{vU}")
    e(f"v_lshl_add_u32 v{vT+6}, v{vT+7}, 4, v{vT+6}")
    e(f"v_and_b32 v{vC}, 1, v{vC}")
    e(f"v_lshl_add_u32 v{vT+6}, v{vC}, 3, v{vT+6}")
    e(f"v_add_u32 v{vB0}, {L_V}, v{vT+6}")
    e(f"v_xor_b32 v{vB1}, 16, v{vB0}")
    e(f"v_add_u32 v{vB1}, 256, v{vB1}")
    e(f"v_bfe_u32 v{vT+4}, v{vI}, 1, 2"); e(f"v_lshlrev_b32 v{vT+4}, 10, v{vT+4}")
    e(f"v_lshl_add_u32 v{vT+4}, v{vG}, 8, v{vT+4}")
    e(f"v_lshrrev_b32 v{vT+5}, 3, v{vI}"); e(f"v_lshl_add_u32 v{vT+4}, v{vT+5}, 4, v{vT+4}")
    e(f"v_and_b32 v{vT+5}, 1, v{vI}"); e(f"v_lshl_add_u32 v{vT+4}, v{vT+5}, 3, v{vT+4}")
    e(f"s_lshl_b32 s{sT}, s3, 5"); e(f"s_add_u32 s{sT}, s{sT}, {L_KVF}")
    e(f"v_add_u32 v{vKW}, s{sT}, v{vT+4}")
    e(f"s_lshl_b32 s{sT}, s3, 10")
    e(f"v_add_u32 v{vXO}, s{sT}, v{vXO}")
    e(f"s_add_u32 s{sTAG}, s{sTAG}, 0x1111")
    for r in range(4):
        e(f"s_bfe_u32 s{sN+r}, s{sTAG}, {(4<<16) | (4*r):#x}")
    e("s_waitcnt lgkmcnt(0)")
    e("s_barrier")
    g.stamp()
    for Gi in range(8):
        for h in range(2):
            e(f"ds_read_b64_tr_b16 v[{vA+4*Gi+2*h}:{vA+4*Gi+2*h+1}], v{vOA} offset:{Gi*1024 + h*256}")
    e("s_waitcnt vmcnt(0)")
    dma(sQ, None, f"s{sGO}", LD)
    e("s_setprio 2")
    e(f"s_cmp_eq_u32 s{sWV}, 7")
    e("s_cbranch_scc1 L_zw")
    e("s_barrier")
    g.stamp()
    def breg(Gi): return (vB + 4*Gi) if Gi < 4 else (vX + 4*(Gi-4))
    for Gi in range(8):
        e(f"ds_read_b64_tr_b16 v[{breg(Gi)}:{breg(Gi)+1}], v{vB0} offset:{Gi*8192}")
        e(f"ds_read_b64_tr_b16 v[{breg(Gi)+2}:{breg(Gi)+3}], v{vB1} offset:{Gi*8192}")
    for Gi in range(8):
        e(f"s_waitcnt lgkmcnt({14-2*Gi})")
        c = "0" if Gi == 0 else f"v[{vAC}:{vAC+3}]"
        e(f"v_mfma_f32_16x16x32_bf16 v[{vAC}:{vAC+3}], v[{vA+4*Gi}:{vA+4*Gi+3}], v[{breg(Gi)}:{breg(Gi)+3}], {c}")
    e("s_nop 7")
    for r in range(4): e(f"v_bfi_b32 v{vAC+r}, 15, s{sN+r}, v{vAC+r}")
    e(f"buffer_store_dwordx4 v[{vAC}:{vAC+3}], v{vXO}, s[{sW}:{sW+3}], s{sSLOT} offen {PUB}")
    e("s_branch L_pub")
    e("L_zw:")
    e(f"v_mov_b32 v{vT}, 0x3f803f80")
    for r in range(1, 4): e(f"v_mov_b32 v{vT+r}, v{vT}")
    e(f"v_lshlrev_b32 v{vXO}, 4, v{vL}"); e(f"v_add_u32 v{vXO}, 8192, v{vXO}")
    e(f"v_lshlrev_b32 v{vKW}, 3, v{vL}"); e(f"v_add_u32 v{vKW}, {L_KVF+4096}, v{vKW}")
    e("s_waitcnt lgkmcnt(0)")
    for Gi in range(8):
        c = "0" if Gi == 0 else f"v[{vAC}:{vAC+3}]"
        e(f"v_mfma_f32_16x16x32_bf16 v[{vAC}:{vAC+3}], v[{vA+4*Gi}:{vA+4*Gi+3}], v[{vT}:{vT+3}], {c}")
    e("s_nop 7")
    for r in range(4): e(f"v_bfi_b32 v{vAC+r}, 15, s{sN+r}, v{vAC+r}")
    e(f"buffer_store_dwordx4 v[{vAC}:{vAC+3}], v{vXO}, s[{sW}:{sW+3}], s{sSLOT} offen {PUB}")
    e("s_barrier")
    e("L_pub:")
    POS = opts.get("pollpos", "mid")
    sMISS = 69 + 0
    sMISS = 17
    e(f"s_mov_b32 s{sCNT}, 0")
    e(f"s_mov_b32 s{sMISS}, 0xfe")
    e("s_barrier")
    for r in range(4): e(f"v_and_b32 v{vA+r}, -16, v{vAC+r}")
    if opts.get("refetch"):
        e("s_waitcnt vmcnt(0)")
        e(f"buffer_load_dwordx4 v[{vA+4}:{vA+7}], v{vXO}, s[{sW}:{sW+3}], s{sSLOT} offen {POL}")
    else:
        e("s_waitcnt vmcnt(1)")
    g.stamp()
    readx()
    e(f"s_call_b64 s[{sRET}:{sRET+1}], L_phi")
    g.stamp()
    e("s_barrier")
    g.stamp()
    e("s_branch L_ploop")
    e("L_phi:")
    phi()
    e(f"s_setpc_b64 s[{sRET}:{sRET+1}]")
    e("L_Lpath:")
    e("s_waitcnt lgkmcnt(0)")
    e("s_barrier")
    e("s_waitcnt vmcnt(0)")
    e("s_barrier")
    e("s_barrier")
    dma(sQ, None, f"s{sGO}", LD)
    e("s_barrier")
    e("s_waitcnt vmcnt(0)")
    if opts.get("stamps") or opts.get("hold"): e(f"s_memrealtime s[{70+2*5}:{71+2*5}]")
    readx()
    e(f"s_call_b64 s[{sRET}:{sRET+1}], L_phi")
    if opts.get("stamps") or opts.get("hold"): e(f"s_memrealtime s[{70+2*6}:{71+2*6}]")
    e("s_branch L_skipP")
    e("L_ploop:")
    for j in range(1, 8):
        e(f"s_bitcmp1_b32 s{sMISS}, {j}")
        e(f"s_cbranch_scc0 L_is{j}")
        e(f"s_xor_b32 s{sT}, s{sSLOT}, {j*SLOT}")
        e(f"buffer_load_dwordx4 v[{vA+4*j}:{vA+4*j+3}], v{vXO}, s[{sW}:{sW+3}], s{sT} offen {POL}")
        e(f"L_is{j}:")
    e("s_waitcnt vmcnt(0)")
    for j in range(1, 8):
        a = vA + 4*j
        e(f"s_bitcmp1_b32 s{sMISS}, {j}")
        e(f"s_cbranch_scc0 L_ck{j}")
        for r in range(4): e(f"v_xor_b32 v{a+r}, s{sN+r}, v{a+r}")
        e(f"v_or_b32 v{vT}, v{a}, v{a+1}")
        e(f"v_or3_b32 v{vT}, v{a+2}, v{a+3}, v{vT}")
        e(f"v_and_b32 v{vT}, 15, v{vT}")
        e(f"v_cmp_ne_u32 vcc, 0, v{vT}")
        e(f"s_cbranch_vccnz L_ck{j}")
        e(f"s_bitset0_b32 s{sMISS}, {j}")
        e(f"L_ck{j}:")
    e(f"s_cmp_eq_u32 s{sMISS}, 0")
    e("s_cbranch_scc1 L_pdone")
    e(f"s_add_u32 s{sCNT}, s{sCNT}, 1")
    e(f"s_cmp_le_u32 s{sCNT}, 0x40000")
    e("s_cbranch_scc1 L_ploop")
    e("L_pdone:")
    for (d, s2) in [(0,1),(2,3),(4,5),(6,7),(0,2),(4,6),(0,4)]:
        e(f"v_pk_add_f32 v[{vA+4*d}:{vA+4*d+1}], v[{vA+4*d}:{vA+4*d+1}], v[{vA+4*s2}:{vA+4*s2+1}]")
        e(f"v_pk_add_f32 v[{vA+4*d+2}:{vA+4*d+3}], v[{vA+4*d+2}:{vA+4*d+3}], v[{vA+4*s2+2}:{vA+4*s2+3}]")
    e(f"v_cvt_pk_bf16_f32 v{vT+2}, v{vA}, v{vA+1}")
    e(f"v_cvt_pk_bf16_f32 v{vT+3}, v{vA+2}, v{vA+3}")
    e(f"v_mov_b32 v{vT+4}, {L_CNT}"); e(f"v_mov_b32 v{vT+5}, 1")
    e(f"ds_write_b64 v{vKW}, v[{vT+2}:{vT+3}]")
    e("s_mov_b64 exec, 1")
    e(f"ds_add_u32 v{vT+4}, v{vT+5}")
    e(f"s_and_b32 s{sT}, s{sBLK}, 7")
    e(f"s_lshl_b32 s{sT}, s{sT}, 4")
    e(f"s_or_b32 s{sT}, s{sT}, s{sWV}")
    e(f"s_cmp_lg_u32 s{sT}, 7")
    e(f"s_cbranch_scc1 L_nobump")
    e(f"v_mov_b32 v{vT+4}, s{sEP}"); e(f"v_mov_b32 v{vT+5}, s{sTAG}")
    e(f"buffer_store_dword v{vT+5}, v{vT+4}, s[{sW}:{sW+3}], 0 offen")
    e("L_nobump:")
    e("s_mov_b64 exec, -1")
    e("s_setprio 0")
    g.stamp()
    e("L_skipP:")
    e(f"v_lshlrev_b32 v{vT}, 4, v{vL}")
    e(f"v_add_u32 v{vT}, {L_KVF}, v{vT}")
    e(f"v_lshlrev_b32 v{vT+1}, 3, v{vL}")
    e(f"v_add_u32 v{vT+1}, {L_KVF+4096}, v{vT+1}")
    e(f"v_lshlrev_b32 v{vOA}, 4, v{vI}"); e(f"v_lshl_add_u32 v{vOA}, v{vG}, 10, v{vOA}")
    e(f"v_mov_b32 v{vT+4}, {L_CNT}")
    e("L_spin:")
    e(f"ds_read_b32 v{vT+5}, v{vT+4}")
    e("s_waitcnt lgkmcnt(0)")
    e(f"v_cmp_ne_u32 vcc, 9, v{vT+5}")
    e("s_cbranch_vccz L_go")
    e("s_sleep 1")
    e("s_branch L_spin")
    e("L_go:")
    g.stamp()
    e(f"ds_read_b64 v[{vAC}:{vAC+1}], v{vT+1}")
    for u in range(4): e(f"ds_read_b128 v[{vB+4*u}:{vB+4*u+3}], v{vT} offset:{1024*u}")
    e("s_waitcnt lgkmcnt(4)")
    e(f"v_mfma_f32_16x16x16_bf16 v[{vZ}:{vZ+3}], v[{vPH}:{vPH+1}], v[{vAC}:{vAC+1}], 0")
    for t in range(8):
        if t % 2 == 0: e(f"s_waitcnt lgkmcnt({3 - t//2})")
        e(f"v_mfma_f32_16x16x16_bf16 v[{vA+4*t}:{vA+4*t+3}], v[{vPH}:{vPH+1}], v[{vB+2*t}:{vB+2*t+1}], 0")
    rnd4(vZ)
    for r in range(4): e(f"v_add_f32 v{vZ+r}, s{sEPS}, v{vZ+r}")
    rnd4(vZ)
    for r in range(4): e(f"v_rcp_f32 v{vZ+r}, v{vZ+r}")
    if opts.get("fastout"): e("s_nop 0")
    if opts.get("fastout"):
        for t in range(8):
            e(f"v_pk_mul_f32 v[{vA+4*t}:{vA+4*t+1}], v[{vA+4*t}:{vA+4*t+1}], v[{vZ}:{vZ+1}]")
        for r in range(2):
            o = vX + 4*r
            for u in range(4): e(f"v_cvt_pk_bf16_f32 v{o+u}, v{vA+8*u+r}, v{vA+8*u+4+r}")
            e(f"buffer_store_dwordx4 v[{o}:{o+3}], v{vOA}, s[{sO}:{sO+3}], s{sGO} offen offset:{256*r} {ST}")
        for t in range(8):
            e(f"v_pk_mul_f32 v[{vA+4*t+2}:{vA+4*t+3}], v[{vA+4*t+2}:{vA+4*t+3}], v[{vZ+2}:{vZ+3}]")
        for r in range(2, 4):
            o = vX + 4*r
            for u in range(4): e(f"v_cvt_pk_bf16_f32 v{o+u}, v{vA+8*u+r}, v{vA+8*u+4+r}")
            e(f"buffer_store_dwordx4 v[{o}:{o+3}], v{vOA}, s[{sO}:{sO+3}], s{sGO} offen offset:{256*r} {ST}")
    else:
      for r in range(4):
        o = vX + 4*r
        for u in range(4): e(f"v_cvt_pk_bf16_f32 v{o+u}, v{vA+8*u+r}, v{vA+8*u+4+r}")
        for u in range(4):
            e(f"v_lshlrev_b32 v{vT+2*u}, 16, v{o+u}")
            e(f"v_and_b32 v{vT+2*u+1}, s{sHI}, v{o+u}")
        for u in range(4):
            e(f"v_pk_mul_f32 v[{vT+2*u}:{vT+2*u+1}], v[{vT+2*u}:{vT+2*u+1}], v[{vZ+(r&~1)}:{vZ+(r&~1)+1}] op_sel:[0,{r&1}] op_sel_hi:[1,{r&1}]")
        for u in range(4): e(f"v_cvt_pk_bf16_f32 v{o+u}, v{vT+2*u}, v{vT+2*u+1}")
        e(f"buffer_store_dwordx4 v[{o}:{o+3}], v{vOA}, s[{sO}:{sO+3}], s{sGO} offen offset:{256*r} {ST}")
    g.stamp()
    if opts.get("hold"):
        e("s_waitcnt vmcnt(0)"); e("s_barrier")
        g.stamp()
        e("s_waitcnt lgkmcnt(0)")
        e(f"s_cmp_lg_u32 s{sWV}, {SW}"); e("s_cbranch_scc1 L_end")
        k = int(opts.get("holdk", 0))
        e(f"s_add_u32 s4, s{70+2*k}, {int(opts['hold'])}")
        e("L_hold:")
        e("s_memrealtime s[6:7]"); e("s_waitcnt lgkmcnt(0)")
        e("s_sub_u32 s6, s6, s4"); e("s_cmp_lt_i32 s6, 0"); e("s_cbranch_scc1 L_hold")
    elif opts.get("stamps"):
        e("s_waitcnt vmcnt(0)"); e("s_barrier")
        g.stamp()
        n = g.nst + 1
        e("s_waitcnt lgkmcnt(0)")
        e(f"s_cmp_lg_u32 s{sWV}, {SW}"); e("s_cbranch_scc1 L_end")
        e("s_mov_b64 exec, 1")
        e(f"s_mul_i32 s6, s2, {n*8}"); e(f"s_add_u32 s6, s6, {STAMP_OFF}"); e("v_mov_b32 v1, s6")
        for i in range(g.nst):
            e(f"v_mov_b32 v2, s{70+2*i}"); e(f"v_mov_b32 v3, s{71+2*i}")
            e(f"buffer_store_dwordx2 v[2:3], v1, s[{sW}:{sW+3}], 0 offen offset:{8*i}"); e("s_nop 1")
        e(f"s_mul_i32 s7, s{sCNT}, 100"); e("s_add_u32 s7, s7, s70"); e("s_addc_u32 s8, s71, 0")
        e(f"v_mov_b32 v2, s7"); e(f"v_mov_b32 v3, s8")
        e(f"buffer_store_dwordx2 v[2:3], v1, s[{sW}:{sW+3}], 0 offen offset:{8*g.nst}")
    body = "\n".join(("    " + x if not x.endswith(":") else x) for x in g.t if x)
    lds = (L_END + 1023)//1024*1024
    return HEAD + f"""; @launch grid=(256,1,1) block=(1024,1,1) lds={lds}
.amdgcn_target "amdgcn-amd-amdhsa--gfx950"
.text
.globl {KN}
.p2align 8
.type {KN},@function
{KN}:
{body}
L_end:
    s_endpgm
.section .rodata,"a"
.p2align 6
.amdhsa_kernel {KN}
  .amdhsa_next_free_vgpr 128
  .amdhsa_next_free_sgpr 96
  .amdhsa_accum_offset 128
  .amdhsa_group_segment_fixed_size 0
  .amdhsa_kernarg_size 56
  .amdhsa_user_sgpr_count 2
  .amdhsa_user_sgpr_kernarg_segment_ptr 1
  .amdhsa_system_sgpr_workgroup_id_x 1
  .amdhsa_float_denorm_mode_32 3
.end_amdhsa_kernel
"""

if __name__ == "__main__":
    out = sys.argv[1]
    opts = {}
    for a in sys.argv[2:]:
        k, _, v = a.partition("=")
        opts[k] = ("" if v == "none" else v.replace("+", " ")) if v else True
    open(out, "w").write(gen(opts))
```

```python
import sys, struct
KN = "standalone__linear_kernel_rfa__prompt_kernel"
TB = 32*2048*128*2
def f2u(x): return struct.unpack("<I", struct.pack("<f", x))[0]

HEAD = """; Kernarg layout for this problem (56 bytes, ptrs only, base s[0:1]):
"""

L_KQ = 0
L_V = 65536
L_PHI = 131072
L_OM = L_PHI + 8192
L_KVF = L_OM + 4096
L_CNT = L_KVF + 4096 + 512
L_END = L_CNT + 64
SLOT = 16384
EPOCH_IN_SLOT = 12288
STAMP_OFF = 128 << 20
NH = 7

class G:
    def __init__(s, opts):
        s.o = opts; s.t = []; s.nst = 0
    def e(s, x): s.t.append(x)
    def stamp(s):
        if s.o.get("stamps") or s.o.get("hold"):
            i = s.nst; s.nst += 1
            s.e(f"s_memrealtime s[{70+2*i}:{71+2*i}]")

def gen(opts):
    g = G(opts); e = g.e
    LD = opts.get("ld", "nt"); ST = opts.get("st", "nt")
    PUB = opts.get("pub", "sc1"); POL = opts.get("pol", "sc1")
    SW = int(opts.get("stampwave", 8))
    sQ, sK, sV, sO, sOM, sW = 24, 28, 32, 36, 40, 44
    sBLK, sWV, sLB, sGO, sT, sCNT = 18, 19, 20, 21, 22, 23
    sSC, sHI, sL2E, sEPS, sTAG, sEP, sSLOT = 48, 50, 51, 52, 53, 54, 55
    sM = 56
    sN = 64
    sRET = 68
    vL, vI, vG = 1, 2, 3
    vD = 4
    vF = 8
    vOA, vONE, vB0, vB1 = 12, 13, 14, 15
    vX = 16
    vOM = 32
    vP = 48; vGm = 52; vS = 56
    vT = 60
    vPH = 68
    vXO = 70
    vKW = 71
    vA = 72
    vB = 104
    vAC = 120; vZ = 124
    g.stamp()
    e(f"s_load_dwordx2 s[{sK}:{sK+1}], s[0:1], 8")
    e(f"s_load_dwordx2 s[{sOM}:{sOM+1}], s[0:1], 24")
    e(f"s_load_dwordx2 s[{sV}:{sV+1}], s[0:1], 16")
    e(f"s_load_dwordx2 s[{sW}:{sW+1}], s[0:1], 48")
    e(f"s_load_dwordx2 s[{sQ}:{sQ+1}], s[0:1], 0")
    e(f"s_load_dwordx2 s[{sO}:{sO+1}], s[0:1], 32")
    e("s_cmp_ge_u32 s2, 256"); e("s_cbranch_scc1 L_end")
    e(f"v_lshrrev_b32 v{vT}, 6, v0")
    e(f"v_and_b32 v{vL}, 63, v0")
    e(f"v_readfirstlane_b32 s{sWV}, v{vT}")
    e(f"s_and_b32 s3, s2, 7"); e(f"s_lshl_b32 s3, s3, 5"); e(f"s_lshr_b32 s{sBLK}, s2, 3"); e(f"s_add_u32 s{sBLK}, s{sBLK}, s3")
    e(f"v_and_b32 v{vI}, 15, v{vL}")
    e(f"v_lshrrev_b32 v{vG}, 4, v{vL}")
    e(f"v_xor_b32 v{vT}, v{vI}, v{vG}")
    e(f"v_lshlrev_b32 v{vT}, 4, v{vT}")
    e(f"v_lshl_add_u32 v{vD}, v{vG}, 8, v{vT}")
    for b in range(1, 4): e(f"v_xor_b32 v{vD+b}, {64*b}, v{vD}")
    e(f"s_lshl_b32 s{sLB}, s{sWV}, 12")
    e(f"s_lshl_b32 s{sGO}, s{sBLK}, 16")
    e(f"s_add_u32 s{sGO}, s{sGO}, s{sLB}")
    for r, n in [(sK, TB), (sOM, 4096), (sV, TB), (sQ, TB), (sO, TB), (sW, 1 << 28)]:
        e(f"s_mov_b32 s{r+2}, {n}"); e(f"s_mov_b32 s{r+3}, 0x20000")
    e(f"s_lshl_b32 s{sSLOT}, s{sBLK}, 14")
    e(f"s_and_b32 s{sEP}, s{sSLOT}, {~(8*SLOT-1) & 0xffffffff:#x}")
    e(f"s_add_u32 s{sEP}, s{sEP}, {EPOCH_IN_SLOT}")
    def dma(srd, m0expr, soff, pol):
        if m0expr: e(m0expr); e("s_nop 0")
        for b in range(4):
            e(f"buffer_load_dwordx4 v{vD+b}, s[{srd}:{srd+3}], {soff} offen offset:{1024*b} {pol} lds")
    e(f"s_mov_b32 m0, s{sLB}")
    e(f"s_cmp_lg_u32 s{sWV}, 0")
    e("s_waitcnt lgkmcnt(0)")
    dma(sK, None, f"s{sGO}", LD)
    e(f"s_load_dword s{sTAG}, s[{sW}:{sW+1}], s{sEP}")
    e("s_cbranch_scc1 L_noom")
    dma(sOM, f"s_mov_b32 m0, {L_OM}", "0", "")
    if not opts.get("notouch"):
        e(f"buffer_load_dword v{vT+2}, v{vD}, s[{sW}:{sW+3}], s{sSLOT} offen")
        e(f"buffer_load_dword v{vT+3}, v{vD}, s[{sO}:{sO+3}], s{sGO} offen")
    e(f"v_mov_b32 v{vT+4}, {L_CNT}"); e(f"v_mov_b32 v{vT+5}, 0")
    e(f"ds_write_b32 v{vT+4}, v{vT+5}")
    e("s_waitcnt vmcnt(2) lgkmcnt(0)" if not opts.get("notouch") else "s_waitcnt vmcnt(0) lgkmcnt(0)")
    e("L_noom:")
    e(f"s_add_u32 m0, s{sLB}, {L_V}")
    e(f"s_cmp_ge_u32 s{sWV}, {NH}")
    e("s_cbranch_scc1 L_lowp")
    e("s_setprio 1")
    e("L_lowp:")
    e("s_barrier")
    dma(sV, None, f"s{sGO}", LD)
    e("s_setprio 0")
    g.stamp()
    e(f"v_lshl_add_u32 v{vF}, v{vI}, 8, v{vT}")
    e(f"v_add_u32 v{vT+4}, {L_OM}, v{vF}")
    for b in range(1, 4): e(f"v_xor_b32 v{vT+4+b}, {64*b}, v{vT+4}")
    for j in range(4): e(f"ds_read_b128 v[{vOM+4*j}:{vOM+4*j+3}], v{vT+4+j}")
    e(f"v_add_u32 v{vF}, s{sLB}, v{vF}")
    for b in range(1, 4): e(f"v_xor_b32 v{vF+b}, {64*b}, v{vF}")
    e(f"s_mov_b32 s{sSC}, {f2u(128.0**-0.25):#x}"); e(f"s_mov_b32 s{sSC+1}, s{sSC}")
    e(f"s_mov_b32 s{sHI}, 0xffff0000")
    e(f"s_mov_b32 s{sL2E}, {f2u(1.4426950408889634):#x}")
    e(f"s_mov_b32 s{sEPS}, {f2u(1e-6):#x}")
    for r in range(4):
        m = 0x1000010000100001 << r
        e(f"s_mov_b32 s{sM+2*r}, {m & 0xffffffff:#x}"); e(f"s_mov_b32 s{sM+2*r+1}, {m >> 32:#x}")
    e(f"v_mov_b32 v{vONE}, 1.0")
    e(f"v_lshlrev_b32 v{vXO}, 4, v{vL}")
    e("s_waitcnt vmcnt(4)")
    def readx():
        for j in range(4): e(f"ds_read_b128 v[{vX+4*j}:{vX+4*j+3}], v{vF+j}")
    readx()
    def rnd4(b):
        e(f"v_cvt_pk_bf16_f32 v{vT+4}, v{b}, v{b+1}")
        e(f"v_cvt_pk_bf16_f32 v{vT+5}, v{b+2}, v{b+3}")
        e(f"v_lshlrev_b32 v{b}, 16, v{vT+4}")
        e(f"v_and_b32 v{b+1}, s{sHI}, v{vT+4}")
        e(f"v_lshlrev_b32 v{b+2}, 16, v{vT+5}")
        e(f"v_and_b32 v{b+3}, s{sHI}, v{vT+5}")
    def phi():
        for j in range(4):
            e(f"s_waitcnt lgkmcnt({3-j})")
            x = vX + 4*j
            for r in range(4):
                e(f"v_lshlrev_b32 v{vT+2*r}, 16, v{x+r}")
                e(f"v_and_b32 v{vT+2*r+1}, s{sHI}, v{x+r}")
            for r in range(4):
                e(f"v_pk_mul_f32 v[{vT+2*r}:{vT+2*r+1}], v[{vT+2*r}:{vT+2*r+1}], s[{sSC}:{sSC+1}]")
            for r in range(4):
                e(f"v_cvt_pk_bf16_f32 v{x+r}, v{vT+2*r}, v{vT+2*r+1}")
            if j > 0:
                jj = j-1
                c = "0" if jj == 0 else f"v[{vGm}:{vGm+3}]"
                e(f"v_mfma_f32_16x16x32_bf16 v[{vGm}:{vGm+3}], v[{vX+4*jj}:{vX+4*jj+3}], v[{vX+4*jj}:{vX+4*jj+3}], {c}")
                c = "0" if jj == 0 else f"v[{vP}:{vP+3}]"
                e(f"v_mfma_f32_16x16x32_bf16 v[{vP}:{vP+3}], v[{vOM+4*jj}:{vOM+4*jj+3}], v[{vX+4*jj}:{vX+4*jj+3}], {c}")
        e(f"v_mfma_f32_16x16x32_bf16 v[{vGm}:{vGm+3}], v[{vX+12}:{vX+15}], v[{vX+12}:{vX+15}], v[{vGm}:{vGm+3}]")
        e(f"v_mfma_f32_16x16x32_bf16 v[{vP}:{vP+3}], v[{vOM+12}:{vOM+15}], v[{vX+12}:{vX+15}], v[{vP}:{vP+3}]")
        e("s_nop 6")
        e(f"v_cndmask_b32 v{vT}, 0, v{vGm}, s[{sM}:{sM+1}]")
        for r in range(1, 4):
            e(f"v_cndmask_b32 v{vT}, v{vT}, v{vGm+r}, s[{sM+2*r}:{sM+2*r+1}]")
        e(f"v_cvt_pk_bf16_f32 v{vT+4}, v{vP}, v{vP+1}")
        e(f"v_cvt_pk_bf16_f32 v{vT+5}, v{vP+2}, v{vP+3}")
        e(f"v_mfma_f32_16x16x4_f32 v[{vS}:{vS+3}], v{vONE}, v{vT}, 0")
        e(f"v_lshlrev_b32 v{vP}, 16, v{vT+4}")
        e(f"v_and_b32 v{vP+1}, s{sHI}, v{vT+4}")
        e(f"v_lshlrev_b32 v{vP+2}, 16, v{vT+5}")
        e(f"v_and_b32 v{vP+3}, s{sHI}, v{vT+5}")
        e(f"v_mov_b32 v{vT+6}, 0x3e800000")
        e("s_nop 4")
        e(f"v_cvt_pk_bf16_f32 v{vT}, v{vS}, v{vS}")
        e(f"v_and_b32 v{vT}, s{sHI}, v{vT}")
        for r in range(4): e(f"v_fma_f32 v{vP+r}, v{vT}, -0.5, v{vP+r}")
        rnd4(vP)
        for r in range(4): e(f"v_mul_f32 v{vP+r}, s{sL2E}, v{vP+r}")
        for r in range(4): e(f"v_exp_f32 v{vP+r}, v{vP+r}")
        e("s_nop 0")
        rnd4(vP)
        for r in range(4): e(f"v_fma_f32 v{vP+r}, v{vP+r}, v{vT+6}, s{sEPS}")
        e(f"v_cvt_pk_bf16_f32 v{vPH}, v{vP}, v{vP+1}")
        e(f"v_cvt_pk_bf16_f32 v{vPH+1}, v{vP+2}, v{vP+3}")
    e("s_waitcnt lgkmcnt(0)")
    g.stamp()
    e(f"s_call_b64 s[{sRET}:{sRET+1}], L_phi")
    e(f"v_and_b32 v{vT}, 1, v{vI}"); e(f"v_lshlrev_b32 v{vT}, 8, v{vT}")
    e(f"v_lshrrev_b32 v{vT+1}, 1, v{vI}"); e(f"v_lshl_add_u32 v{vT}, v{vT+1}, 5, v{vT}")
    e(f"v_lshl_add_u32 v{vT}, v{vG}, 3, v{vT}")
    e(f"s_lshr_b32 s{sT}, s{sLB}, 3"); e(f"s_add_u32 s{sT}, s{sT}, {L_PHI}")
    e(f"v_add_u32 v{vT}, s{sT}, v{vT}")
    e(f"ds_write_b64 v{vT}, v[{vPH}:{vPH+1}]")
    e(f"s_mov_b32 m0, s{sLB}")
    e(f"s_cmp_lt_u32 s{sWV}, {NH}")
    e("s_cbranch_scc1 L_Lpath")
    vR, vC, vU = vT+2, vT+3, vT+4
    e(f"v_bfe_u32 v{vR}, v{vL}, 2, 2"); e(f"v_and_b32 v{vC}, 3, v{vL}")
    e(f"v_and_b32 v{vU}, 1, v{vG}"); e(f"v_lshl_add_u32 v{vU}, v{vU}, 2, v{vR}")
    e(f"v_lshrrev_b32 v{vT+5}, 1, v{vG}")
    e(f"v_lshl_add_u32 v{vT+6}, v{vT+5}, 4, v{vU}")
    e(f"v_lshlrev_b32 v{vT+6}, 5, v{vT+6}"); e(f"v_lshl_add_u32 v{vT+6}, v{vC}, 3, v{vT+6}")
    e(f"v_add_u32 v{vOA}, {L_PHI}, v{vT+6}")
    e(f"v_lshlrev_b32 v{vU}, 1, v{vU}")
    e(f"v_lshl_add_u32 v{vT+6}, v{vT+5}, 4, v{vU}")
    e(f"v_lshlrev_b32 v{vT+6}, 8, v{vT+6}")
    e(f"v_lshrrev_b32 v{vT+7}, 1, v{vC}")
    e(f"s_and_b32 s3, s{sWV}, 7")
    e(f"s_lshl_b32 s{sT}, s3, 1")
    e(f"v_or_b32 v{vT+7}, s{sT}, v{vT+7}")
    e(f"v_xor_b32 v{vT+7}, v{vT+7}, v{vU}")
    e(f"v_lshl_add_u32 v{vT+6}, v{vT+7}, 4, v{vT+6}")
    e(f"v_and_b32 v{vC}, 1, v{vC}")
    e(f"v_lshl_add_u32 v{vT+6}, v{vC}, 3, v{vT+6}")
    e(f"v_add_u32 v{vB0}, {L_V}, v{vT+6}")
    e(f"v_xor_b32 v{vB1}, 16, v{vB0}")
    e(f"v_add_u32 v{vB1}, 256, v{vB1}")
    e(f"v_bfe_u32 v{vT+4}, v{vI}, 1, 2"); e(f"v_lshlrev_b32 v{vT+4}, 10, v{vT+4}")
    e(f"v_lshl_add_u32 v{vT+4}, v{vG}, 8, v{vT+4}")
    e(f"v_lshrrev_b32 v{vT+5}, 3, v{vI}"); e(f"v_lshl_add_u32 v{vT+4}, v{vT+5}, 4, v{vT+4}")
    e(f"v_and_b32 v{vT+5}, 1, v{vI}"); e(f"v_lshl_add_u32 v{vT+4}, v{vT+5}, 3, v{vT+4}")
    e(f"s_lshl_b32 s{sT}, s3, 5"); e(f"s_add_u32 s{sT}, s{sT}, {L_KVF}")
    e(f"v_add_u32 v{vKW}, s{sT}, v{vT+4}")
    e(f"s_lshl_b32 s{sT}, s3, 10")
    e(f"v_add_u32 v{vXO}, s{sT}, v{vXO}")
    e(f"s_add_u32 s{sTAG}, s{sTAG}, 0x1111")
    for r in range(4):
        e(f"s_bfe_u32 s{sN+r}, s{sTAG}, {(4<<16) | (4*r):#x}")
    e("s_waitcnt lgkmcnt(0)")
    e("s_barrier")
    g.stamp()
    for Gi in range(8):
        for h in range(2):
            e(f"ds_read_b64_tr_b16 v[{vA+4*Gi+2*h}:{vA+4*Gi+2*h+1}], v{vOA} offset:{Gi*1024 + h*256}")
    sMISS, sINC = 17, 16
    e("s_setprio 2")
    e(f"s_mov_b32 s{sCNT}, 0")
    e(f"s_cmp_eq_u32 s{sWV}, 7")
    e("s_cbranch_scc1 L_zw")
    e("s_waitcnt vmcnt(0)")
    dma(sQ, None, f"s{sGO}", LD)
    e(f"s_mov_b32 s{sINC}, 1")
    e("s_barrier")
    g.stamp()
    def breg(Gi): return (vB + 4*Gi) if Gi < 4 else (vX + 4*(Gi-4))
    for Gi in range(8):
        e(f"ds_read_b64_tr_b16 v[{breg(Gi)}:{breg(Gi)+1}], v{vB0} offset:{Gi*8192}")
        e(f"ds_read_b64_tr_b16 v[{breg(Gi)+2}:{breg(Gi)+3}], v{vB1} offset:{Gi*8192}")
    for Gi in range(8):
        e(f"s_waitcnt lgkmcnt({14-2*Gi})")
        c = "0" if Gi == 0 else f"v[{vAC}:{vAC+3}]"
        e(f"v_mfma_f32_16x16x32_bf16 v[{vAC}:{vAC+3}], v[{vA+4*Gi}:{vA+4*Gi+3}], v[{breg(Gi)}:{breg(Gi)+3}], {c}")
    e("s_nop 7")
    for r in range(4): e(f"v_bfi_b32 v{vAC+r}, 15, s{sN+r}, v{vAC+r}")
    e(f"buffer_store_dwordx4 v[{vAC}:{vAC+3}], v{vXO}, s[{sW}:{sW+3}], s{sSLOT} offen {PUB}")
    e("s_barrier")
    for r in range(4): e(f"v_and_b32 v{vA+r}, -16, v{vAC+r}")
    def issue_all():
        for j in range(1, 8):
            e(f"s_xor_b32 s{sT}, s{sSLOT}, {j*SLOT}")
            e(f"buffer_load_dwordx4 v[{vA+4*j}:{vA+4*j+3}], v{vXO}, s[{sW}:{sW+3}], s{sT} offen {POL}")
    PFW = int(opts.get("pollfirst", 99))
    e("s_waitcnt vmcnt(1)")
    g.stamp()
    readx()
    if PFW < 16:
        e(f"s_cmp_lt_u32 s{sWV}, {PFW}")
        e("s_cbranch_scc1 L_pf1")
        issue_all()
        e(f"s_call_b64 s[{sRET}:{sRET+1}], L_phi")
        e("s_branch L_check")
        e("L_pf1:")
    e(f"s_call_b64 s[{sRET}:{sRET+1}], L_phi")
    g.stamp()
    if opts.get("b3"): e("s_barrier")
    g.stamp()
    issue_all()
    if opts.get("fine"): e(f"s_memrealtime s[{70+2*1}:{71+2*1}]")
    e("s_branch L_check")
    e("L_phi:")
    phi()
    e(f"s_setpc_b64 s[{sRET}:{sRET+1}]")
    e("L_den:")
    e(f"v_mov_b32 v{vT+4}, {L_CNT}")
    e(f"v_lshlrev_b32 v{vT+1}, 3, v{vL}")
    e(f"v_add_u32 v{vT+1}, {L_KVF+4096}, v{vT+1}")
    e("L_zspin:")
    e(f"ds_read_b32 v{vT+5}, v{vT+4}")
    e(f"ds_read_b64 v[{vAC}:{vAC+1}], v{vT+1}")
    e("s_waitcnt lgkmcnt(0)")
    e(f"v_cmp_gt_u32 vcc, 0x100, v{vT+5}")
    e("s_cbranch_vccz L_zgo")
    e("s_sleep 1")
    e("s_branch L_zspin")
    e("L_zgo:")
    e(f"v_mfma_f32_16x16x16_bf16 v[{vZ}:{vZ+3}], v[{vPH}:{vPH+1}], v[{vAC}:{vAC+1}], 0")
    e(f"v_lshlrev_b32 v{vD}, 4, v{vL}")
    e(f"v_add_u32 v{vD}, {L_KVF}, v{vD}")
    e(f"v_lshlrev_b32 v{vOA}, 4, v{vI}"); e(f"v_lshl_add_u32 v{vOA}, v{vG}, 10, v{vOA}")
    e(f"v_mov_b32 v{vD+1}, {L_CNT}")
    e("s_nop 2")
    rnd4(vZ)
    for r in range(4): e(f"v_add_f32 v{vZ+r}, s{sEPS}, v{vZ+r}")
    rnd4(vZ)
    for r in range(4): e(f"v_rcp_f32 v{vZ+r}, v{vZ+r}")
    e(f"s_setpc_b64 s[{sRET}:{sRET+1}]")
    e("L_Lpath:")
    e("s_waitcnt lgkmcnt(0)")
    e("s_barrier")
    e("s_waitcnt vmcnt(0)")
    e("s_barrier")
    e("s_barrier")
    dma(sQ, None, f"s{sGO}", LD)
    if opts.get("b3"): e("s_barrier")
    e("s_waitcnt vmcnt(0)")
    if opts.get("stamps") or opts.get("hold"): e(f"s_memrealtime s[{70+2*5}:{71+2*5}]")
    readx()
    e(f"s_call_b64 s[{sRET}:{sRET+1}], L_phi")
    if opts.get("stamps") or opts.get("hold"): e(f"s_memrealtime s[{70+2*6}:{71+2*6}]")
    e("s_branch L_lastden")
    e("L_zw:")
    e(f"v_mov_b32 v{vT}, 0x3f803f80")
    for r in range(1, 4): e(f"v_mov_b32 v{vT+r}, v{vT}")
    e(f"v_lshlrev_b32 v{vXO}, 4, v{vG}"); e(f"v_add_u32 v{vXO}, 8192, v{vXO}")
    e(f"v_lshlrev_b32 v{vKW}, 3, v{vL}"); e(f"v_add_u32 v{vKW}, {L_KVF+4096}, v{vKW}")
    e(f"s_mov_b32 s{sINC}, 0x100")
    e("s_waitcnt lgkmcnt(0)")
    for Gi in range(8):
        c = "0" if Gi == 0 else f"v[{vAC}:{vAC+3}]"
        e(f"v_mfma_f32_16x16x32_bf16 v[{vAC}:{vAC+3}], v[{vA+4*Gi}:{vA+4*Gi+3}], v[{vT}:{vT+3}], {c}")
    e("s_nop 7")
    for r in range(4): e(f"v_bfi_b32 v{vAC+r}, 15, s{sN+r}, v{vAC+r}")
    e("s_mov_b32 exec_lo, 0x00010001"); e("s_mov_b32 exec_hi, 0x00010001")
    e(f"buffer_store_dwordx4 v[{vAC}:{vAC+3}], v{vXO}, s[{sW}:{sW+3}], s{sSLOT} offen {PUB}")
    e("s_mov_b64 exec, -1")
    e("s_waitcnt vmcnt(1)")
    dma(sQ, None, f"s{sGO}", LD)
    for r in range(4): e(f"v_and_b32 v{vA+r}, -16, v{vAC+r}")
    e("s_barrier")
    e("s_barrier")
    issue_all()
    e("s_waitcnt vmcnt(7)")
    readx()
    e(f"s_call_b64 s[{sRET}:{sRET+1}], L_phi")
    if opts.get("b3"): e("s_barrier")
    e("s_branch L_check")
    e("L_retry:")
    for j in range(1, 8):
        a = vA + 4*j
        e(f"v_or_b32 v{vT}, v{a}, v{a+1}")
        e(f"v_or3_b32 v{vT}, v{a+2}, v{a+3}, v{vT}")
        e(f"v_and_b32 v{vT}, 15, v{vT}")
        e(f"v_cmp_ne_u32 vcc, 0, v{vT}")
        e(f"s_cbranch_vccz L_rt{j}")
        e(f"s_xor_b32 s{sT}, s{sSLOT}, {j*SLOT}")
        e(f"buffer_load_dwordx4 v[{a}:{a+3}], v{vXO}, s[{sW}:{sW+3}], s{sT} offen {POL}")
        e(f"s_branch L_ru{j}")
        e(f"L_rt{j}:")
        for r in range(4): e(f"v_xor_b32 v{a+r}, s{sN+r}, v{a+r}")
        e(f"L_ru{j}:")
    e("s_waitcnt vmcnt(0)")
    e("L_check:")
    for j in range(1, 8):
        a = vA + 4*j
        e(f"s_waitcnt vmcnt({7-j})")
        if opts.get("fine") and j in (1, 7): e(f"s_memrealtime s[{70+2*{1:2,7:3}[j]}:{71+2*{1:2,7:3}[j]}]")
        for r in range(4): e(f"v_xor_b32 v{a+r}, s{sN+r}, v{a+r}")
        if j == 1: e(f"v_or_b32 v{vT}, v{a}, v{a+1}")
        else: e(f"v_or3_b32 v{vT}, v{a}, v{a+1}, v{vT}")
        e(f"v_or3_b32 v{vT}, v{a+2}, v{a+3}, v{vT}")
        if j & 1:
            d = vB + 4*(j//2)
            e(f"v_pk_add_f32 v[{d}:{d+1}], v[{a-4}:{a-3}], v[{a}:{a+1}]")
            e(f"v_pk_add_f32 v[{d+2}:{d+3}], v[{a-2}:{a-1}], v[{a+2}:{a+3}]")
        if j == 3 or j == 7:
            d = vB + 4*(j//2 - 1)
            e(f"v_pk_add_f32 v[{d}:{d+1}], v[{d}:{d+1}], v[{d+4}:{d+5}]")
            e(f"v_pk_add_f32 v[{d+2}:{d+3}], v[{d+2}:{d+3}], v[{d+6}:{d+7}]")
    e(f"v_and_b32 v{vT}, 15, v{vT}")
    e(f"v_cmp_ne_u32 vcc, 0, v{vT}")
    e(f"v_pk_add_f32 v[{vB}:{vB+1}], v[{vB}:{vB+1}], v[{vB+8}:{vB+9}]")
    e(f"v_pk_add_f32 v[{vB+2}:{vB+3}], v[{vB+2}:{vB+3}], v[{vB+10}:{vB+11}]")
    e("s_cbranch_vccz L_pdone")
    e(f"s_add_u32 s{sCNT}, s{sCNT}, 1")
    e(f"s_cmp_le_u32 s{sCNT}, 0x40000")
    e("s_cbranch_scc1 L_retry")
    e("L_pdone:")
    e(f"v_cvt_pk_bf16_f32 v{vT+2}, v{vB}, v{vB+1}")
    e(f"v_cvt_pk_bf16_f32 v{vT+3}, v{vB+2}, v{vB+3}")
    e(f"v_mov_b32 v{vT+4}, {L_CNT}"); e(f"v_mov_b32 v{vT+5}, s{sINC}")
    e(f"ds_write_b64 v{vKW}, v[{vT+2}:{vT+3}]")
    e("s_mov_b64 exec, 1")
    e(f"ds_add_u32 v{vT+4}, v{vT+5}")
    e("s_mov_b64 exec, -1")
    e("s_setprio 0")
    g.stamp()
    e(f"s_cmp_lg_u32 s{sWV}, 7")
    e(f"s_cbranch_scc1 L_lastden")
    e(f"s_and_b32 s{sT}, s{sBLK}, 7")
    e(f"s_cbranch_scc1 L_lastden")
    e(f"v_mov_b32 v{vT+4}, s{sEP}"); e(f"v_mov_b32 v{vT+5}, s{sTAG}")
    e(f"buffer_store_dword v{vT+5}, v{vT+4}, s[{sW}:{sW+3}], 0 offen")
    e("L_lastden:")
    e(f"s_call_b64 s[{sRET}:{sRET+1}], L_den")
    e("L_spin:")
    e(f"ds_read_b32 v{vT+5}, v{vD+1}")
    for u in range(4): e(f"ds_read_b128 v[{vB+4*u}:{vB+4*u+3}], v{vD} offset:{1024*u}")
    e("s_waitcnt lgkmcnt(4)")
    e(f"v_cmp_ne_u32 vcc, 0x108, v{vT+5}")
    e("s_cbranch_vccz L_go")
    e("s_sleep 1")
    e("s_branch L_spin")
    e("L_go:")
    g.stamp()
    for t in range(8):
        if t % 2 == 0: e(f"s_waitcnt lgkmcnt({3 - t//2})")
        e(f"v_mfma_f32_16x16x16_bf16 v[{vA+4*t}:{vA+4*t+3}], v[{vPH}:{vPH+1}], v[{vB+2*t}:{vB+2*t+1}], 0")
    e("s_nop 4")
    if opts.get("fastout"):
        for t in range(8):
            e(f"v_pk_mul_f32 v[{vA+4*t}:{vA+4*t+1}], v[{vA+4*t}:{vA+4*t+1}], v[{vZ}:{vZ+1}]")
        for r in range(2):
            o = vX + 4*r
            for u in range(4): e(f"v_cvt_pk_bf16_f32 v{o+u}, v{vA+8*u+r}, v{vA+8*u+4+r}")
            e(f"buffer_store_dwordx4 v[{o}:{o+3}], v{vOA}, s[{sO}:{sO+3}], s{sGO} offen offset:{256*r} {ST}")
        for t in range(8):
            e(f"v_pk_mul_f32 v[{vA+4*t+2}:{vA+4*t+3}], v[{vA+4*t+2}:{vA+4*t+3}], v[{vZ+2}:{vZ+3}]")
        for r in range(2, 4):
            o = vX + 4*r
            for u in range(4): e(f"v_cvt_pk_bf16_f32 v{o+u}, v{vA+8*u+r}, v{vA+8*u+4+r}")
            e(f"buffer_store_dwordx4 v[{o}:{o+3}], v{vOA}, s[{sO}:{sO+3}], s{sGO} offen offset:{256*r} {ST}")
    else:
      for r in range(4):
        o = vX + 4*r
        for u in range(4): e(f"v_cvt_pk_bf16_f32 v{o+u}, v{vA+8*u+r}, v{vA+8*u+4+r}")
        for u in range(4):
            e(f"v_lshlrev_b32 v{vT+2*u}, 16, v{o+u}")
            e(f"v_and_b32 v{vT+2*u+1}, s{sHI}, v{o+u}")
        for u in range(4):
            e(f"v_pk_mul_f32 v[{vT+2*u}:{vT+2*u+1}], v[{vT+2*u}:{vT+2*u+1}], v[{vZ+(r&~1)}:{vZ+(r&~1)+1}] op_sel:[0,{r&1}] op_sel_hi:[1,{r&1}]")
        for u in range(4): e(f"v_cvt_pk_bf16_f32 v{o+u}, v{vT+2*u}, v{vT+2*u+1}")
        e(f"buffer_store_dwordx4 v[{o}:{o+3}], v{vOA}, s[{sO}:{sO+3}], s{sGO} offen offset:{256*r} {ST}")
    g.stamp()
    if opts.get("hold"):
        e("s_waitcnt vmcnt(0)"); e("s_barrier")
        g.stamp()
        e("s_waitcnt lgkmcnt(0)")
        e(f"s_cmp_lg_u32 s{sWV}, {SW}"); e("s_cbranch_scc1 L_end")
        k = int(opts.get("holdk", 0))
        e(f"s_add_u32 s4, s{70+2*k}, {int(opts['hold'])}")
        e("L_hold:")
        e("s_memrealtime s[6:7]"); e("s_waitcnt lgkmcnt(0)")
        e("s_sub_u32 s6, s6, s4"); e("s_cmp_lt_i32 s6, 0"); e("s_cbranch_scc1 L_hold")
    elif opts.get("stamps"):
        e("s_waitcnt vmcnt(0)"); e("s_barrier")
        g.stamp()
        n = g.nst + 1
        e("s_waitcnt lgkmcnt(0)")
        e(f"s_cmp_lg_u32 s{sWV}, {SW}"); e("s_cbranch_scc1 L_end")
        e("s_mov_b64 exec, 1")
        e(f"s_mul_i32 s6, s2, {n*8}"); e(f"s_add_u32 s6, s6, {STAMP_OFF}"); e("v_mov_b32 v1, s6")
        for i in range(g.nst):
            e(f"v_mov_b32 v2, s{70+2*i}"); e(f"v_mov_b32 v3, s{71+2*i}")
            e(f"buffer_store_dwordx2 v[2:3], v1, s[{sW}:{sW+3}], 0 offen offset:{8*i}"); e("s_nop 1")
        e(f"s_mul_i32 s7, s{sCNT}, 100"); e("s_add_u32 s7, s7, s70"); e("s_addc_u32 s8, s71, 0")
        e(f"v_mov_b32 v2, s7"); e(f"v_mov_b32 v3, s8")
        e(f"buffer_store_dwordx2 v[2:3], v1, s[{sW}:{sW+3}], 0 offen offset:{8*g.nst}")
    body = "\n".join(("    " + x if not x.endswith(":") else x) for x in g.t if x)
    lds = (L_END + 1023)//1024*1024
    return HEAD + f"""; @launch grid=(256,1,1) block=(1024,1,1) lds={lds}
.amdgcn_target "amdgcn-amd-amdhsa--gfx950"
.text
.globl {KN}
.p2align 8
.type {KN},@function
{KN}:
{body}
L_end:
    s_endpgm
.section .rodata,"a"
.p2align 6
.amdhsa_kernel {KN}
  .amdhsa_next_free_vgpr 128
  .amdhsa_next_free_sgpr 96
  .amdhsa_accum_offset 128
  .amdhsa_group_segment_fixed_size 0
  .amdhsa_kernarg_size 56
  .amdhsa_user_sgpr_count 2
  .amdhsa_user_sgpr_kernarg_segment_ptr 1
  .amdhsa_system_sgpr_workgroup_id_x 1
  .amdhsa_float_denorm_mode_32 3
.end_amdhsa_kernel
"""

if __name__ == "__main__":
    out = sys.argv[1]
    opts = {}
    for a in sys.argv[2:]:
        k, _, v = a.partition("=")
        opts[k] = ("" if v == "none" else v.replace("+", " ")) if v else True
    open(out, "w").write(gen(opts))
```
